```python
import torch

def _softmax(x, axis=-1):
    return torch.softmax(x, dim=axis)
def _gelu(x):
    return torch.nn.functional.gelu(x, approximate="tanh")
def _silu(x):
    return torch.nn.functional.silu(x)
def _sigmoid(x):
    return torch.sigmoid(x)
def _layernorm(x, axis=-1, eps=1e-5):
    m = x.mean(dim=axis, keepdim=True)
    v = x.var(dim=axis, keepdim=True, unbiased=False)
    return (x - m) / torch.sqrt(v + eps)
def _scatter_add(tgt, idx, src, axis=0):
    return tgt.clone().index_add_(axis, idx, src)
def _segment_sum(src, seg, n):
    out = torch.zeros((n,) + src.shape[1:], dtype=src.dtype)
    return out.index_add_(0, seg, src)
def _pad(x, pw):
    flat = tuple(v for pair in reversed(pw) for v in pair)
    return torch.nn.functional.pad(x, flat)

kernel_name = 'sequential_preLN__mha_block_cached__dense_activation_gelu__decode'

def setup_inputs():

    _w = (lambda a: (lambda t: t.to(torch.bfloat16) if t.is_floating_point() else t)(torch.as_tensor(a)))
    def _A_setup():
        B, Sq, D = 4, 1, 640
        H, Sk, Dh = 32, 8192, 192
        return {
            "x": _w((lambda *s: torch.randn(*s, dtype=torch.bfloat16) * 0.1)(B, Sq, D)),
            "k_cache": _w((lambda *s: torch.randn(*s, dtype=torch.bfloat16) * 1.6)(B, H, Sk, Dh)),
            "v_cache": _w((lambda *s: torch.randn(*s, dtype=torch.bfloat16) * 1.6)(B, H, Sk, Dh)),
            "wq": _w((lambda *s: torch.randn(*s, dtype=torch.bfloat16) * 1.6)(D, H * Dh) * (D ** -0.5)),
            "wo": _w((lambda *s: torch.randn(*s, dtype=torch.bfloat16) * 1.6)(H * Dh, D) * ((H * Dh) ** -0.5)),
        }
    _A_in = _A_setup()

    def _B_setup():
        B, S, D, F = 4, 1, 640, 1536
        return {
            "x": _w((lambda *s: torch.randn(*s, dtype=torch.bfloat16) * 0.1)(B, S, D)),
            "w1": _w((lambda *s: torch.randn(*s, dtype=torch.bfloat16) * 3.2)(D, F) * (D ** -0.5)),
            "b1": _w((lambda *s: torch.randn(*s, dtype=torch.bfloat16) * 3.2)(F) * 0.01),
            "w2": _w((lambda *s: torch.randn(*s, dtype=torch.bfloat16) * 3.2)(F, D) * (F ** -0.5)),
            "b2": _w((lambda *s: torch.randn(*s, dtype=torch.bfloat16) * 3.2)(D) * 0.01),
        }
    _B_in = _B_setup()

    return {
        "A_x": _A_in["x"],
        "A_k_cache": _A_in["k_cache"],
        "A_v_cache": _A_in["v_cache"],
        "A_wq": _A_in["wq"],
        "A_wo": _A_in["wo"],
        "B_x": _B_in["x"],
        "B_w1": _B_in["w1"],
        "B_b1": _B_in["b1"],
        "B_w2": _B_in["w2"],
        "B_b2": _B_in["b2"],
    }

def reference(A_x, A_k_cache, A_v_cache, A_wq, A_wo, B_x, B_w1, B_b1, B_w2, B_b2):
    def _A_ref(x, k_cache, v_cache, wq, wo):
        B, Sq, D = x.shape
        H, Dh = 32, 192
        q = (lambda x, *d: x.permute(*d))((x @ wq).reshape(B, Sq, H, Dh), 0, 2, 1, 3)
        scores = torch.einsum("bhqd,bhkd->bhqk", q, k_cache) * (Dh ** -0.5)
        p = _softmax(scores, axis=-1)
        o = torch.einsum("bhqk,bhkd->bhqd", p, v_cache)
        return (lambda x, *d: x.permute(*d))(o, 0, 2, 1, 3).reshape(B, Sq, H * Dh) @ wo

    def _B_ref(x, w1, b1, w2, b2):
        h = torch.einsum("bsd,df->bsf", x, w1) + b1
        h = _gelu(h)
        return torch.einsum("bsf,fd->bsd", h, w2) + b2

    x = A_x
    h = x + _A_ref(_layernorm(x, axis=-1), A_k_cache, A_v_cache, A_wq, A_wo)
    h2 = h + _B_ref(_layernorm(h, axis=-1), B_w1, B_b1, B_w2, B_b2)
    return h2
```

```python
import re

TRANS = ("v_exp_f32", "v_log_f32", "v_rcp_f32", "v_rsq_f32", "v_sqrt_f32", "v_sin_f32", "v_cos_f32")
_REG = re.compile(r"^(-|\|)?([vs])(?:\[(\d+):(\d+)\]|(\d+))\|?$")


def regs_of(tok):
    tok = tok.strip()
    if tok in ("vcc", "vcc_lo", "vcc_hi"):
        return {("s", "vcc")}
    if tok in ("exec", "exec_lo", "exec_hi"):
        return {("s", "exec")}
    m = _REG.match(tok)
    if not m:
        return set()
    k = m.group(2)
    if m.group(3) is not None:
        return {(k, i) for i in range(int(m.group(3)), int(m.group(4)) + 1)}
    return {(k, int(m.group(5)))}


class Ins:
    def __init__(self, text):
        self.text = text
        t = text.split(";")[0].strip()
        self.label = t[:-1] if t.endswith(":") else None
        self.op = ""
        self.w = set()
        self.r = set()
        self.srcc = set()
        self.srcab = set()
        self.cls = "none"
        self.dpp = False
        self.wide_data = set()
        self.states = 0
        self.target = None
        if self.label is not None or not t or t.startswith("."):
            return
        parts = t.split(None, 1)
        op = parts[0]
        self.op = op
        rest = parts[1] if len(parts) > 1 else ""
        ops = [o.strip() for o in re.split(r",(?![^\[]*\])", rest)] if rest else []
        if ops:
            last = ops[-1].split()
            mods = " ".join(last[1:])
            ops[-1] = last[0] if last else ""
        else:
            mods = ""
        self.states = 1
        base = re.sub(r"_(e32|e64|dpp|sdwa)$", "", op)
        self.base = base
        if op.startswith("v_mfma"):
            self.cls = "mfma"
            self.w = regs_of(ops[0])
            self.srcab = regs_of(ops[1]) | regs_of(ops[2])
            self.srcc = regs_of(ops[3])
            self.r = self.srcab | self.srcc
        elif op.startswith("v_"):
            self.cls = "valu"
            self.dpp = bool(re.search(r"quad_perm|row_|wave_", mods))
            if base == "v_nop":
                pass
            elif base.startswith("v_permlane") and "swap" in base:
                self.w = regs_of(ops[0]) | regs_of(ops[1])
                self.r = set(self.w)
            else:
                self.w = regs_of(ops[0])
                srcs = ops[1:]
                if base.startswith(("v_add_co", "v_sub_co", "v_addc_co", "v_subb_co")):
                    self.w |= regs_of(ops[1])
                    srcs = ops[2:]
                for o in srcs:
                    self.r |= regs_of(o)
                if base.startswith("v_cndmask") and len(srcs) == 2:
                    self.r |= {("s", "vcc")}
                if base.startswith(("v_fmac", "v_dot2c", "v_pk_fmac")) or self.dpp:
                    self.r |= {x for x in self.w if x[0] == "v"}
                if base.startswith("v_dot"):
                    self.srcab = regs_of(srcs[0]) | regs_of(srcs[1])
                    self.srcc = regs_of(srcs[2]) if len(srcs) > 2 else set(self.w)
        elif op.startswith("ds_"):
            self.cls = "ds"
            if op.startswith("ds_read") or "_rtn" in op or op.startswith("ds_bpermute") or op.startswith("ds_swizzle"):
                self.w = regs_of(ops[0])
                for o in ops[1:]:
                    self.r |= regs_of(o)
            else:
                for o in ops:
                    self.r |= regs_of(o)
                if op.endswith(("b128", "b96")):
                    self.wide_data = regs_of(ops[1])
        elif op.startswith(("buffer_", "global_")):
            self.cls = "vmem"
            isload = "_load" in op
            if op.startswith("buffer_"):
                data, others = ops[0], ops[1:]
            elif isload or ("atomic" in op and "sc0" in mods):
                data, others = ops[0], ops[1:]
            else:
                data, others = ops[1], [ops[0]] + ops[2:]
            for o in others:
                self.r |= regs_of(o)
            if isload:
                self.w = regs_of(data)
            else:
                self.r |= regs_of(data)
                if "atomic" in op and "sc0" in mods:
                    self.w = regs_of(data)
                if op.endswith(("x3", "x4")):
                    self.wide_data = regs_of(data)
        elif op.startswith("s_"):
            self.cls = "salu"
            if op == "s_nop":
                self.states = int(ops[0]) + 1
            if op.startswith(("s_cbranch", "s_branch")):
                self.target = ops[0]
        else:
            raise ValueError("unknown instruction: " + text)


def need(p, c):
    n = 0
    pv = {x for x in p.w if x[0] == "v"}
    ps = {x for x in p.w if x[0] == "s"}
    if p.cls == "valu":
        isdot = p.base.startswith("v_dot")
        if c.cls == "valu":
            if c.dpp and pv & c.r:
                n = max(n, 2)
            if c.base.startswith("v_permlane") and pv & c.r:
                n = max(n, 2)
            if c.base in ("v_readfirstlane_b32", "v_readlane_b32") and pv & c.r:
                n = max(n, 1)
            if p.base in TRANS and pv & c.r:
                n = max(n, 1)
            if ps & c.r:
                n = max(n, 4 if c.base in ("v_readlane_b32", "v_writelane_b32") else 2)
            if isdot:
                if c.base == p.base:
                    if pv & c.srcab:
                        n = max(n, 3)
                elif pv & (c.r | c.w):
                    n = max(n, 3)
        elif c.cls == "mfma":
            if pv & c.r:
                n = max(n, 3 if isdot else 2)
        elif c.cls in ("vmem", "ds"):
            if ps & c.r:
                n = max(n, 5)
            if (isdot or p.base in TRANS) and pv & (c.r | c.w):
                n = max(n, 3 if isdot else 1)
    elif p.cls == "mfma":
        if c.cls == "mfma":
            if pv & c.srcab:
                n = max(n, 8)
            if pv & c.srcc and c.srcc != pv:
                n = max(n, 6)
            if pv & c.w and not (c.srcc == pv and c.w == pv):
                n = max(n, 6)
        elif c.cls in ("valu", "vmem", "ds"):
            if pv & (c.r | c.w):
                n = max(n, 8)
            if c.cls == "valu" and p.srcc & c.w:
                n = max(n, 3)
    elif p.cls in ("vmem", "ds"):
        if p.wide_data & c.w:
            n = max(n, 2)
        if c.cls == "valu" and c.dpp and pv & c.r:
            n = max(n, 0)
    return n


def pad(lines):
    ins = [Ins(l) for l in lines]
    MAXD = 8
    total = 0
    start = 0
    while True:
        labels = {x.label: i for i, x in enumerate(ins) if x.label}
        preds = [[] for _ in ins]
        for i, x in enumerate(ins):
            if i + 1 < len(ins) and x.op not in ("s_branch", "s_endpgm"):
                preds[i + 1].append(i)
            if x.target is not None:
                preds[labels[x.target]].append(i)
        fix = None
        for i in range(start, len(ins)):
            c = ins[i]
            if c.cls in ("none", "salu"):
                continue
            worst = 0
            stack = [(p, 0) for p in preds[i]]
            seen = {}
            while stack:
                k, d = stack.pop()
                if d >= MAXD or seen.get(k, 99) <= d:
                    continue
                seen[k] = d
                p = ins[k]
                if p.cls not in ("none", "salu"):
                    worst = max(worst, need(p, c) - d)
                for q in preds[k]:
                    stack.append((q, d + p.states))
            if worst > 0:
                fix = (i, worst)
                break
        if fix is None:
            break
        i, k = fix
        ins.insert(i, Ins(f"s_nop {k - 1}"))
        start = i
        total += 1
    return [x.text for x in ins], total


class Asm:
    def __init__(self):
        self.lines = []
        self.uid = 0

    def __call__(self, text):
        for l in text.split("\n"):
            l = l.strip()
            if l:
                self.lines.append(l)

    def label(self, name):
        self.lines.append(name + ":")

    def fresh(self, stem):
        self.uid += 1
        return f"L_{stem}_{self.uid}"
```

```python
import struct
import sys
from asmlib import Asm, pad

NAME = "sequential_preLN__mha_block_cached__dense_activation_gelu__decode"


def f2u(x):
    return "0x%08x" % struct.unpack("<I", struct.pack("<f", x))[0]


LOG2E = 1.4426950408889634
SCALE = 192 ** -0.5
QP = 0
ST = QP + 32 * 5 * 3072
PP = ST + 32 * 4 * 128
YY = PP + 32 * 4 * 8 * 768
OP = YY + 4 * 8 * 2560
WSEND = OP + 4 * 48 * 2560
L_QJOIN, L_PROG, L_CSJOIN = 0, 4, 8
L_KCNT, L_VCNT, L_XJOIN = 16, 32, 48
L_STAT = 64
L_Q = 256
L_SC = 2048
L_OL = L_SC + 8192
L_XB = L_OL + 24576
L_XS = L_XB + 6144
L_CS = L_XS + 128
L_H = L_CS + 512
L_END = L_H + 1280
SEG = 3145728
DPPM = "row_mask:0xf bank_mask:0xf"

DEFAULTS = dict(stamps=False, gb=4, gc=7, gd=10, gb3=4, gc3=0, wnt="", lam=8, lds=None)


def vr(a, n):
    return f"v[{a}:{a + n - 1}]" if n > 1 else f"v{a}"


def gen(**kw):
    o = dict(DEFAULTS)
    o.update(kw)
    A = Asm()
    K_SRD, V_SRD, WS_SRD = "s[8:11]", "s[12:15]", "s[16:19]"
    X_SRD, WQ_SRD, WO_SRD, W1_SRD, W2_SRD = "s[20:23]", "s[24:27]", "s[28:31]", "s[32:35]", "s[36:39]"
    B1_SRD, B2_SRD, OUT_SRD, DBG_SRD = "s[40:43]", "s[44:47]", "s[48:51]", "s[52:55]"

    def srd(d, p, size):
        A(f"s_mov_b32 s{d}, s{p}\ns_and_b32 s{d + 1}, s{p + 1}, 0xffff\ns_mov_b32 s{d + 2}, {size}\ns_mov_b32 s{d + 3}, 0x20000")

    def exec_set(mask):
        lo, hi = mask & 0xFFFFFFFF, mask >> 32
        if mask == (1 << 64) - 1:
            A("s_mov_b64 exec, -1")
        elif hi == 0 and lo < 0x80000000:
            A(f"s_mov_b64 exec, {lo if lo <= 64 else hex(lo)}")
        else:
            A(f"s_mov_b32 exec_lo, {hex(lo)}\ns_mov_b32 exec_hi, {hex(hi)}")

    FULL = (1 << 64) - 1

    def stamp(slot, t0, t1):
        if not o["stamps"]:
            return
        A("s_memrealtime s[96:97]")
        A("s_add_u32 s98, s80, 0x40000000\ns_addc_u32 s99, s81, 0")
        A(f"s_lshl_b32 s95, s2, 6\ns_add_u32 s95, s95, {slot * 8}")
        A("s_waitcnt lgkmcnt(0)")
        exec_set(1)
        A(f"v_mov_b32 v{t0}, s96\nv_mov_b32 v{t0 + 1}, s97\nv_mov_b32 v{t1}, s95")
        A(f"global_store_dwordx2 v{t1}, v[{t0}:{t0 + 1}], s[98:99]")
        exec_set(FULL)

    def lds_wait(addr_v, off, tmp, cmp_op, rhs, sleep, stem):
        top, done = A.fresh(stem), A.fresh(stem + "_ok")
        A("s_mov_b32 s94, 0x40000")
        A.label(top)
        A(f"ds_read_b32 v{tmp}, v{addr_v} offset:{off}")
        A("s_waitcnt lgkmcnt(0)")
        A(f"v_readfirstlane_b32 s93, v{tmp}")
        A(f"{cmp_op} s93, {rhs}")
        A(f"s_cbranch_scc1 {done}")
        if sleep:
            A(f"s_sleep {sleep}")
        A(f"s_sub_u32 s94, s94, 1\ns_cmp_lg_u32 s94, 0\ns_cbranch_scc1 {top}")
        A.label(done)

    def unpack(lo, hi, src):
        A(f"v_lshlrev_b32 v{lo}, 16, v{src}\nv_and_b32 v{hi}, 0xffff0000, v{src}")

    def rne(v):
        A(f"v_cvt_pk_bf16_f32 v{v}, v{v}, v{v}\nv_and_b32 v{v}, 0xffff0000, v{v}")

    A("s_cmp_ge_u32 s2, 256\ns_cbranch_scc1 L_end")
    A("s_load_dwordx16 s[56:71], s[0:1], 0")
    A("s_load_dwordx8 s[72:79], s[0:1], 64")
    A("s_load_dwordx2 s[80:81], s[0:1], 96")
    A("v_lshrrev_b32 v1, 6, v0\nv_and_b32 v0, 63, v0")
    A("v_readfirstlane_b32 s3, v1")
    A("s_lshr_b32 s4, s2, 3\ns_and_b32 s5, s2, 7")
    A("s_cmp_ge_u32 s3, 4\ns_cbranch_scc1 L_helper")

    XS, YS = 40, 64
    OFFS = [0, 128, 256, 3072, 3200, 3328]

    def issue(slot, srd_name, soff):
        for i in range(6):
            A(f"buffer_load_dwordx4 {vr(slot + 4 * i, 4)}, v1, {srd_name}, {soff} offen offset:{OFFS[i]} nt")

    def kcomp(R, ldsoff):
        for i in range(6):
            for c, (ro, qo) in enumerate([(0, 0), (6, 6), (12, 0), (18, 6)]):
                A(f"v_dot2_f32_bf16 v{28 + c}, v{R + ro + i}, v{8 + qo + i}, {'0' if i == 0 else 'v%d' % (28 + c)}")
        A("v_add_f32 v28, v28, v29\nv_add_f32 v30, v30, v31")
        for m in ("quad_perm:[1,0,3,2]", "quad_perm:[2,3,0,1]", "row_half_mirror"):
            A(f"v_add_f32_dpp v28, v28, v28 {m} {DPPM}\nv_add_f32_dpp v30, v30, v30 {m} {DPPM}")
        A("v_cvt_pk_bf16_f32 v28, v28, v30")
        unpack(29, 30, 28)
        A(f"v_mul_f32 v29, {f2u(SCALE)}, v29\nv_mul_f32 v30, {f2u(SCALE)}, v30")
        A("v_cvt_pk_bf16_f32 v28, v29, v30")
        A(f"ds_write_b32 v2, v28 offset:{ldsoff}")

    def load_q():
        for j in range(3):
            A(f"ds_read_b128 {vr(8 + 4 * j, 4)}, v34 offset:{128 * j}")
        A("v_add_u32 v34, 384, v34")
        A("s_waitcnt lgkmcnt(0)")

    def vprep():
        A("s_waitcnt lgkmcnt(0)")
        unpack(29, 30, 28)
        A("v_sub_f32 v29, v29, v36\nv_sub_f32 v30, v30, v36")
        A(f"v_mul_f32 v29, {f2u(LOG2E)}, v29\nv_mul_f32 v30, {f2u(LOG2E)}, v30")
        A("v_exp_f32 v29, v29\nv_exp_f32 v30, v30")
        A("v_mul_f32 v29, v29, v37\nv_mul_f32 v30, v30, v37")
        A("v_cvt_pk_bf16_f32 v29, v29, v29\nv_cvt_pk_bf16_f32 v30, v30, v30")
        for i in range(4):
            A(f"v_and_b32 v{20 + i}, v29, v{4 + i}\nv_and_b32 v{24 + i}, v30, v{4 + i}")

    def vmfma(R):
        for g in range(2):
            for j in range(3):
                A(f"v_mfma_f32_16x16x32_bf16 {vr(8 + 4 * j, 4)}, {vr(R + 12 * g + 4 * j, 4)}, {vr(20 + 4 * g, 4)}, {vr(8 + 4 * j, 4)}")

    def lds_inc(off_v):
        exec_set(1)
        A(f"ds_add_u32 v{off_v}, v33")
        exec_set(FULL)

    def fetch_stat():
        top, done = A.fresh("stat"), A.fresh("stat_ok")
        A("s_mov_b32 s94, 0x40000")
        A.label(top)
        A(f"ds_read_b128 v[36:39], v35 offset:{L_STAT}")
        A("s_waitcnt lgkmcnt(0)")
        A("v_readfirstlane_b32 s93, v38")
        A(f"s_cmp_lg_u32 s93, 0\ns_cbranch_scc1 {done}")
        A("s_sleep 2")
        A(f"s_sub_u32 s94, s94, 1\ns_cmp_lg_u32 s94, 0\ns_cbranch_scc1 {top}")
        A.label(done)
        A("v_add_u32 v35, 16, v35")

    A("s_setprio 2")
    A("v_lshrrev_b32 v2, 3, v0\nv_mul_u32_u24 v1, 384, v2\nv_and_b32 v3, 7, v0\nv_lshlrev_b32 v34, 4, v3\nv_add_u32 v1, v1, v34")
    A(f"s_mul_i32 s82, s4, {SEG}\ns_lshl_b32 s6, s5, 2\ns_add_u32 s6, s6, s3\ns_mul_i32 s6, s6, 12288\ns_add_u32 s82, s82, s6")
    A("s_mov_b32 s85, s82\ns_mov_b32 s88, 393216")
    A("s_waitcnt lgkmcnt(0)")
    srd(8, 58, 402653184)
    issue(64, K_SRD, "s82")
    if o["stamps"]:
        A("s_cmp_lg_u32 s3, 0\ns_cbranch_scc1 L_nostamp0")
        stamp(0, 28, 30)
        A.label("L_nostamp0")
    srd(12, 60, 402653184)
    srd(16, 80, WSEND)
    A("s_barrier")
    A(f"s_lshl_b32 s6, s3, 11\ns_add_u32 s6, s6, {L_SC}\nv_lshlrev_b32 v2, 2, v2\nv_add_u32 v2, s6, v2")
    A(f"v_add_u32 v34, {L_Q}, v34")
    A("v_and_b32 v28, 1, v0\nv_cmp_eq_u32 vcc, 0, v28\nv_mov_b32 v29, 0xffff0000\nv_mov_b32 v30, 0xffff\nv_cndmask_b32 v28, v29, v30, vcc")
    A("v_lshrrev_b32 v29, 1, v3")
    for i in range(4):
        A(f"v_cmp_eq_u32 vcc, {i}, v29\nv_cndmask_b32 v{4 + i}, 0, v28, vcc")
    A("v_lshlrev_b32 v3, 4, v3\nv_bfe_u32 v28, v0, 4, 1\nv_lshlrev_b32 v28, 7, v28\nv_add_u32 v3, v3, v28")
    A("v_lshrrev_b32 v28, 5, v0\nv_mul_u32_u24 v28, 768, v28\nv_add_u32 v3, v3, v28")
    A(f"s_mul_i32 s6, s3, 1536\ns_add_u32 s6, s6, {L_OL}\nv_add_u32 v3, s6, v3")
    A(f"v_mov_b32 v33, 1\nv_mov_b32 v32, {L_KCNT}\nv_mov_b32 v35, 0\nv_mov_b32 v31, 0")

    def koff(n):
        A(f"s_add_u32 s83, s85, {(n >> 1) * 393216 + (n & 1) * 6144}")

    lam = o["lam"]
    assert lam == 8
    for n in range(1, lam + 1):
        koff(n)
        A("s_waitcnt vmcnt(0)")
        issue(64 + 24 * n if n < lam else XS, K_SRD, "s83")
    A("s_barrier")
    load_q()
    S = lambda i: 64 + 24 * i
    kcomp(S(0), 0)
    koff(9)
    A("s_waitcnt vmcnt(0)")
    issue(S(0), K_SRD, "s83")
    for n in (1, 2, 3):
        kcomp(S(n), 32 * n)
    koff(10)
    A("s_waitcnt vmcnt(0)")
    issue(S(1), K_SRD, "s83")
    for n in (4, 5, 6):
        kcomp(S(n), 32 * n)
    koff(11)
    A("s_waitcnt vmcnt(0)")
    issue(S(2), K_SRD, "s83")
    kcomp(S(7), 32 * 7)
    kcomp(XS, 32 * 8)
    kcomp(S(0), 32 * 9)
    A(f"s_add_u32 s82, s85, {6 * 393216}")
    A("s_waitcnt vmcnt(0)")
    issue(XS, K_SRD, "s82")
    kcomp(S(1), 32 * 10)
    kcomp(S(2), 32 * 11)
    A(f"v_add_u32 v2, {12 * 32}, v2")
    A("s_mov_b32 s84, 6")
    A.label("L_k")
    A("s_add_u32 s83, s82, 6144")
    A("s_waitcnt vmcnt(0)")
    issue(YS, K_SRD, "s83")
    kcomp(XS, 0)
    A("s_add_u32 s84, s84, 1\ns_and_b32 s6, s84, 7")
    A(f"s_cmp_eq_u32 s6, 0\ns_cselect_b32 s7, {32 * SEG - 7 * 393216}, s88\ns_add_u32 s82, s82, s7")
    A("s_cmp_eq_u32 s84, 32\ns_cbranch_scc1 L_k_last")
    A("s_waitcnt vmcnt(0)")
    issue(XS, K_SRD, "s82")
    kcomp(YS, 32)
    A("v_add_u32 v2, 64, v2")
    A("s_cmp_lg_u32 s6, 0\ns_cbranch_scc1 L_k")
    lds_inc(32)
    A("v_add_u32 v32, 4, v32")
    load_q()
    A("s_branch L_k")
    A.label("L_k_last")
    A("s_mov_b32 s82, s85")
    A("s_waitcnt vmcnt(0)")
    issue(XS, V_SRD, "s82")
    kcomp(YS, 32)
    lds_inc(32)
    if o["stamps"]:
        A("s_cmp_lg_u32 s3, 0\ns_cbranch_scc1 L_nostamp1")
        stamp(3, 28, 30)
        A.label("L_nostamp1")
    A(f"v_subrev_u32 v2, {2048 - 64}, v2")
    A(f"v_mov_b32 v32, {L_VCNT}\nv_mov_b32 v31, {L_PROG}")
    A(f"v_lshlrev_b32 v34, 4, v0\nv_add_u32 v34, {L_OL}, v34")
    for i in range(12):
        A(f"v_mov_b32 v{8 + i}, 0")
    A(f"s_lshl_b32 s86, s4, 5\ns_add_u32 s86, s86, s5\ns_mul_i32 s86, s86, 768\ns_add_u32 s86, s86, {PP}")
    A("s_mov_b32 s84, 0")
    fetch_stat()
    A("ds_read_b32 v28, v2")
    vprep()
    A.label("L_v")
    A("s_waitcnt vmcnt(0)")
    A.label("L_v_skip")
    A("s_add_u32 s83, s82, 6144")
    issue(YS, V_SRD, "s83")
    A("ds_read_b32 v28, v2 offset:32")
    vmfma(XS)
    lds_inc(31)
    vprep()
    A("s_add_u32 s84, s84, 1\ns_and_b32 s6, s84, 7")
    A(f"s_cmp_eq_u32 s6, 0\ns_cselect_b32 s7, {32 * SEG - 7 * 393216}, s88\ns_add_u32 s82, s82, s7")
    A("v_add_u32 v2, 64, v2")
    A("s_cmp_eq_u32 s84, 32")
    A("s_waitcnt vmcnt(0)")
    A("s_cbranch_scc1 L_v_noissue")
    issue(XS, V_SRD, "s82")
    A.label("L_v_noissue")
    vmfma(YS)
    A("s_cmp_eq_u32 s6, 0\ns_cbranch_scc1 L_flush")
    A("ds_read_b32 v28, v2")
    lds_inc(31)
    vprep()
    A("s_branch L_v")
    A.label("L_flush")
    exec_set(0xFF00FF0000FF00FF)
    for j in range(3):
        A(f"ds_write_b128 v3, {vr(8 + 4 * j, 4)} offset:{256 * j}")
    exec_set(1)
    A("ds_add_rtn_u32 v28, v32, v33")
    A("ds_add_u32 v31, v33")
    exec_set(FULL)
    A("s_waitcnt lgkmcnt(0)")
    A("v_readfirstlane_b32 s87, v28")
    A("s_cmp_lg_u32 s87, 3\ns_cbranch_scc1 L_notlast")
    exec_set((1 << 48) - 1)
    for i in range(8):
        A(f"ds_read_b128 {vr(96 + 4 * i, 4)}, v34 offset:{768 * i}")
    A("v_lshlrev_b32 v28, 4, v0")
    for lvl, (cnt, step) in enumerate([(4, 4), (2, 8), (1, 16)]):
        for i in range(cnt):
            a = 96 + 2 * step * i
            if lvl == 0:
                A(f"s_waitcnt lgkmcnt({6 - 2 * i})")
            A(f"v_pk_add_f32 v[{a}:{a + 1}], v[{a}:{a + 1}], v[{a + step}:{a + step + 1}]")
            A(f"v_pk_add_f32 v[{a + 2}:{a + 3}], v[{a + 2}:{a + 3}], v[{a + step + 2}:{a + step + 3}]")
    for i in range(4):
        A(f"v_min_u32 v{96 + i}, -2, v{96 + i}")
    A(f"buffer_store_dwordx4 v[96:99], v28, {WS_SRD}, s86 offen sc1")
    exec_set(FULL)
    if o["stamps"]:
        A("s_cmp_lg_u32 s84, 32\ns_cbranch_scc1 L_nostamp2")
        stamp(1, 28, 30)
        A.label("L_nostamp2")
    A.label("L_notlast")
    A("s_cmp_eq_u32 s84, 32\ns_cbranch_scc1 L_end")
    for i in range(12):
        A(f"v_mov_b32 v{8 + i}, 0")
    A("v_add_u32 v3, 6144, v3\nv_add_u32 v34, 6144, v34\nv_add_u32 v32, 4, v32")
    A("s_add_u32 s86, s86, 6144")
    fetch_stat()
    A("ds_read_b32 v28, v2")
    vprep()
    A("s_cmp_lg_u32 s87, 3\ns_cbranch_scc1 L_v")
    A("s_waitcnt vmcnt(1)")
    A("s_branch L_v_skip")

    A.label("L_helper")
    A("s_sub_u32 s82, s3, 4")
    A("v_lshlrev_b32 v4, 2, v0\nv_mov_b32 v5, 0")
    A("s_cmp_lg_u32 s82, 0\ns_cbranch_scc1 L_noinit")
    A("ds_write_b32 v4, v5")
    A.label("L_noinit")
    A("v_and_b32 v1, 15, v0\nv_lshrrev_b32 v2, 4, v0")
    A("s_lshl_b32 s83, s5, 2\ns_add_u32 s83, s83, s82\ns_mul_i32 s84, s83, 43\ns_lshr_b32 s84, s84, 8")
    A("s_mul_i32 s6, s84, 6\ns_sub_u32 s85, s83, s6")
    A("v_lshrrev_b32 v5, 2, v1\nv_mul_u32_u24 v5, 1280, v5")
    A("v_and_b32 v6, 3, v1\nv_lshl_add_u32 v6, v2, 2, v6\nv_mul_u32_u24 v6, 80, v6\nv_add_u32 v6, v6, v5")
    A("v_lshl_add_u32 v7, v2, 4, v5")
    A(f"v_mul_u32_u24 v3, {8 * 12288}, v2\nv_lshl_add_u32 v3, v1, 2, v3")
    A(f"s_lshl_b32 s86, s84, 8\ns_mul_i32 s87, s84, {128 * 12288}\ns_mul_i32 s6, s4, 384\ns_add_u32 s87, s87, s6")
    A("s_lshl_b32 s6, s85, 6\ns_add_u32 s87, s87, s6")
    A("s_waitcnt lgkmcnt(0)")
    srd(20, 56, 5120)
    srd(24, 62, 640 * 6144 * 2)
    for i in range(5):
        A(f"buffer_load_dwordx4 {vr(64 + 4 * i, 4)}, v6, {X_SRD}, 0 offen offset:{16 * i}")
    for t in range(4):
        A(f"buffer_load_dwordx4 {vr(84 + 4 * t, 4)}, v7, {X_SRD}, s86 offen offset:{64 * t}")
    for t in range(4):
        for jj in range(8):
            A(f"buffer_load_dword v{128 + 8 * t + jj}, v3, {WQ_SRD}, s87 offen {o['wnt']}")
            if (t, jj) != (3, 7):
                A(f"s_add_u32 s87, s87, {12288 if jj < 7 else 25 * 12288}")
    A("s_barrier")
    srd(16, 80, WSEND)
    srd(52, 78, 256)
    srd(28, 64, 6144 * 640 * 2)
    srd(32, 68, 640 * 1536 * 2)
    srd(36, 72, 1536 * 640 * 2)
    srd(40, 70, 1536 * 2)
    srd(44, 74, 640 * 2)
    srd(48, 76, 4 * 640 * 2)
    A("s_lshr_b32 s89, s4, 2\ns_and_b32 s6, s4, 3\ns_mul_i32 s6, s6, 5\ns_add_u32 s90, s6, s5")
    A("s_sub_u32 s6, s5, 5\ns_lshl_b32 s6, s6, 4\ns_lshr_b32 s7, s4, 1\ns_add_u32 s91, s6, s7")
    A("s_bitcmp1_b32 s4, 0\ns_cselect_b32 s88, 0, 2\ns_cmp_lt_u32 s5, 5\ns_cselect_b32 s88, 1, s88")
    A("s_mov_b32 s60, 0x05040100\ns_mov_b32 s61, 0x07060302\ns_mov_b32 s62, 0x3f803f80")
    A(f"s_lshl_b32 s6, s4, 2\ns_add_u32 s6, s6, s82\ns_lshl_b32 s57, s6, 7\ns_lshl_b32 s6, s6, 3\ns_add_u32 s6, s6, s5")
    A(f"s_mul_i32 s56, s6, 768\ns_add_u32 s56, s56, {PP}")
    A(f"s_add_u32 s57, s57, {ST}\ns_lshl_b32 s6, s5, 3\ns_add_u32 s64, s57, s6")
    A(f"s_lshl_b32 s6, s82, 3\ns_add_u32 s6, s6, s89\ns_mul_i32 s58, s6, 2560\ns_lshl_b32 s6, s90, 7\ns_add_u32 s58, s58, s6\ns_add_u32 s58, s58, {YY}")
    A(f"s_cmp_eq_u32 s88, 1\ns_cselect_b32 s58, s58, {WSEND}")
    A(f"s_mul_i32 s6, s82, 48\ns_add_u32 s6, s6, s91\ns_mul_i32 s59, s6, 2560\ns_add_u32 s59, s59, {OP}")
    A(f"s_cmp_eq_u32 s88, 2\ns_cselect_b32 s59, s59, {WSEND}")
    A(f"s_mul_i32 s6, s4, 5\ns_add_u32 s6, s6, s84\ns_mul_i32 s63, s6, 3072\ns_lshl_b32 s6, s85, 7\ns_add_u32 s63, s63, s6\ns_add_u32 s63, s63, {QP}")
    A(f"s_cmp_lt_u32 s83, 30\ns_cselect_b32 s63, s63, {WSEND}")
    A("v_lshlrev_b32 v4, 4, v0")
    for i in range(4):
        A(f"v_mov_b32 v{8 + i}, -1")

    def ln_scalars(s1, s2, t):
        A(f"v_mul_f32 v{s1}, {f2u(1 / 640)}, v{s1}\nv_mul_f32 v{s2}, {f2u(1 / 640)}, v{s2}")
        A(f"v_fma_f32 v{s2}, -v{s1}, v{s1}, v{s2}\nv_max_f32 v{s2}, 0, v{s2}")
        A(f"v_cvt_pk_bf16_f32 v{t}, v{s1}, v{s2}")
        unpack(s1, s2, t)
        A(f"v_add_f32 v{s2}, {f2u(1e-5)}, v{s2}")
        rne(s2)
        A(f"v_sqrt_f32 v{s2}, v{s2}")
        rne(s2)
        A(f"v_rcp_f32 v{s2}, v{s2}")

    A("s_waitcnt vmcnt(36)")
    for i in range(20):
        A(f"v_dot2_f32_bf16 v12, v{64 + i}, s62, {'0' if i == 0 else 'v12'}")
        A(f"v_dot2_f32_bf16 v13, v{64 + i}, v{64 + i}, {'0' if i == 0 else 'v13'}")
    for m in ("quad_perm:[1,0,3,2]", "quad_perm:[2,3,0,1]"):
        A(f"v_add_f32_dpp v12, v12, v12 {m} {DPPM}\nv_add_f32_dpp v13, v13, v13 {m} {DPPM}")
    for sw in ("v_permlane16_swap_b32", "v_permlane32_swap_b32"):
        A(f"v_mov_b32 v14, v12\nv_mov_b32 v15, v13\n{sw} v12, v14\n{sw} v13, v15\nv_add_f32 v12, v12, v14\nv_add_f32 v13, v13, v15")
    ln_scalars(12, 13, 14)
    A("s_waitcnt vmcnt(32)")
    for i in range(0, 16, 2):
        a, b = 84 + i, 85 + i
        unpack(14, 15, a)
        unpack(16, 17, b)
        for r in range(14, 18):
            A(f"v_sub_f32 v{r}, v{r}, v12")
        A(f"v_cvt_pk_bf16_f32 v{a}, v14, v15\nv_cvt_pk_bf16_f32 v{b}, v16, v17")
        unpack(14, 15, a)
        unpack(16, 17, b)
        for r in range(14, 18):
            A(f"v_mul_f32 v{r}, v{r}, v13")
        A(f"v_cvt_pk_bf16_f32 v{a}, v14, v15\nv_cvt_pk_bf16_f32 v{b}, v16, v17")
    A(f"buffer_store_dwordx4 v[8:11], v4, {WS_SRD}, s59 offen sc1")
    A(f"buffer_store_dwordx4 v[8:11], v4, {WS_SRD}, s59 offen offset:1024 sc1")
    exec_set((1 << 48) - 1)
    A(f"buffer_store_dwordx4 v[8:11], v4, {WS_SRD}, s56 offen sc1")
    exec_set((1 << 32) - 1)
    A(f"buffer_store_dwordx4 v[8:11], v4, {WS_SRD}, s59 offen offset:2048 sc1")
    exec_set(0xFF)
    A(f"buffer_store_dwordx4 v[8:11], v4, {WS_SRD}, s58 offen sc1")
    exec_set(1)
    A(f"buffer_store_dwordx2 v[8:9], v4, {WS_SRD}, s64 offen sc1")
    exec_set(FULL)
    A("v_mul_u32_u24 v5, 768, v2\nv_lshl_add_u32 v5, v1, 3, v5")

    def frags(dst, raw):
        for r in range(4):
            A(f"v_perm_b32 v{dst + r}, v{raw + 2 * r + 1}, v{raw + 2 * r}, s60")
            A(f"v_perm_b32 v{dst + 4 + r}, v{raw + 2 * r + 1}, v{raw + 2 * r}, s61")

    for t in range(4):
        A(f"s_waitcnt vmcnt({6 + 8 * (3 - t)})")
        frags(160 + 8 * t, 128 + 8 * t)
        for f in range(2):
            A(f"v_mfma_f32_16x16x32_bf16 {vr(100 + 4 * f, 4)}, {vr(84 + 4 * t, 4)}, {vr(160 + 8 * t + 4 * f, 4)}, {'0' if t == 0 else vr(100 + 4 * f, 4)}")
    A("v_mov_b32 v101, v104")
    A(f"v_mov_b32_dpp v102, v100 row_shl:1 {DPPM}\nv_mov_b32_dpp v103, v101 row_shl:1 {DPPM}")
    exec_set(0x5555555555555555)
    A(f"buffer_store_dwordx4 v[100:103], v5, {WS_SRD}, s63 offen sc1")
    exec_set(1)
    A("v_mov_b32 v33, 1\nv_mov_b32 v32, 0")
    A("s_waitcnt vmcnt(0)")
    A(f"ds_add_rtn_u32 v12, v32, v33 offset:{L_QJOIN}")
    A("s_waitcnt lgkmcnt(0)")
    A("v_readfirstlane_b32 s6, v12")
    A("s_cmp_lg_u32 s6, 3\ns_cbranch_scc1 L_qdone")
    A(f"buffer_store_byte v33, v32, {DBG_SRD}, s2 offen sc1")
    A("s_lshl_b32 s7, s4, 3\ns_mov_b32 s94, 0x8000")
    A.label("L_qpoll")
    A(f"buffer_load_dwordx2 v[12:13], v32, {DBG_SRD}, s7 offen sc1")
    A("s_waitcnt vmcnt(0)")
    A("v_and_b32 v12, v12, v13")
    A("v_readfirstlane_b32 s6, v12")
    A("s_cmp_eq_u32 s6, 0x01010101\ns_cbranch_scc1 L_qflag")
    A("s_sub_u32 s94, s94, 1\ns_cmp_lg_u32 s94, 0\ns_cbranch_scc1 L_qpoll")
    A.label("L_qflag")
    exec_set(FULL)
    A(f"s_mul_i32 s7, s4, {5 * 3072}")
    if QP:
        A(f"s_add_u32 s7, s7, {QP}")
    for rb in range(5):
        for i in range(3):
            A(f"buffer_load_dwordx4 {vr(64 + (rb * 3 + i) * 4, 4)}, v4, {WS_SRD}, s7 offen offset:{1024 * i} sc1")
        if rb < 4:
            A("s_add_u32 s7, s7, 3072")
    stamp(7, 12, 14)
    A(f"v_lshlrev_b32 v5, 3, v0\nv_add_u32 v5, {L_Q}, v5")
    for rb in range(1, 5):
        A(f"s_waitcnt vmcnt({3 * (4 - rb) + (1 if o['stamps'] else 0)})")
        for i in range(0, 12, 2):
            A(f"v_pk_add_f32 v[{64 + i}:{65 + i}], v[{64 + i}:{65 + i}], v[{64 + 12 * rb + i}:{65 + 12 * rb + i}]")
    for i in range(6):
        A(f"v_cvt_pk_bf16_f32 v{12 + i}, v{64 + 2 * i}, v{65 + 2 * i}")
    for i in range(3):
        A(f"ds_write_b64 v5, v[{12 + 2 * i}:{13 + 2 * i}] offset:{512 * i}")
    A("s_waitcnt lgkmcnt(0)")
    stamp(2, 12, 14)
    A.label("L_qdone")
    exec_set(FULL)
    A("v_mov_b32 v33, 1\nv_mov_b32 v32, 0")
    A("s_barrier")

    A("s_cmp_eq_u32 s88, 0\ns_cbranch_scc1 L_stats")
    A("s_cmp_eq_u32 s88, 2\ns_cbranch_scc1 L_wc")
    A("v_mul_u32_u24 v3, 2560, v2\nv_lshl_add_u32 v3, v1, 2, v3")
    A(f"s_lshl_b32 s6, s89, 2\ns_add_u32 s92, s6, s82\ns_mul_i32 s7, s92, {192 * 1280}\ns_lshl_b32 s6, s90, 6\ns_add_u32 s7, s7, s6")
    for t in range(6):
        for q in range(4):
            for hi in range(2):
                A(f"buffer_load_dword v{160 + 8 * t + 4 * hi + q}, v3, {WO_SRD}, s7 offen offset:{1280 * hi} {o['wnt']}")
            if (t, q) != (5, 3):
                A(f"s_add_u32 s7, s7, {8 * 1280}")
    for t in range(6):
        A(f"s_waitcnt vmcnt({8 * (5 - t)})")
        frags(64 + 8 * t, 160 + 8 * t)
    A("s_branch L_stats")
    A.label("L_wc")
    A(f"v_mul_u32_u24 v3, {8 * 3072}, v2\nv_lshl_add_u32 v3, v1, 2, v3")
    A(f"s_mul_i32 s7, s82, {160 * 3072}\ns_lshl_b32 s6, s91, 6\ns_add_u32 s7, s7, s6")
    for t in range(5):
        for q in range(4):
            for lo in range(2):
                A(f"buffer_load_dword v{160 + 8 * t + 2 * q + lo}, v3, {W1_SRD}, s7 offen offset:{3072 * lo} {o['wnt']}")
            if (t, q) != (4, 3):
                A(f"s_add_u32 s7, s7, {2 * 3072 if q < 3 else 26 * 3072}")
    A("v_and_b32 v40, 7, v0\nv_lshl_add_u32 v40, v2, 3, v40\nv_lshlrev_b32 v12, 1, v40\ns_lshl_b32 s6, s91, 6")
    A(f"buffer_load_ushort v41, v12, {B1_SRD}, s6 offen")
    for t in range(5):
        A(f"s_waitcnt vmcnt({8 * (4 - t) + 1})")
        frags(64 + 8 * t, 160 + 8 * t)
    A(f"v_mul_u32_u24 v3, {8 * 1280}, v2\nv_lshl_add_u32 v3, v1, 2, v3")
    A(f"s_mul_i32 s7, s91, {32 * 1280}\ns_mul_i32 s6, s82, 320\ns_add_u32 s7, s7, s6")
    for jj in range(8):
        for t in range(5):
            A(f"buffer_load_dword v{200 + 8 * t + jj}, v3, {W2_SRD}, s7 offen offset:{64 * t} {o['wnt']}")
        if jj < 7:
            A("s_add_u32 s7, s7, 1280")
    for i in range(4):
        A(f"v_mov_b32 v{24 + i}, s62")
    for t in range(5):
        for f in range(2):
            A(f"v_mfma_f32_16x16x32_bf16 {vr(12 + 4 * f, 4)}, v[24:27], {vr(64 + 8 * t + 4 * f, 4)}, {'0' if t == 0 else vr(12 + 4 * f, 4)}")
    A(f"s_lshl_b32 s6, s82, 7\ns_add_u32 s6, s6, {L_CS}\nv_lshlrev_b32 v20, 3, v1\nv_add_u32 v20, s6, v20")
    A("v_mov_b32 v13, v16")
    exec_set(0xFFFF)
    A("ds_write_b64 v20, v[12:13]")
    exec_set(1)
    A(f"ds_add_u32 v32, v33 offset:{L_CSJOIN}")
    exec_set(FULL)
    lds_wait(32, L_CSJOIN, 12, "s_cmp_eq_u32", 4, 1, "cs")
    A("v_lshlrev_b32 v20, 2, v40")
    for jp in range(4):
        A(f"ds_read_b32 v{12 + jp}, v20 offset:{L_CS + 128 * jp}")
    A("s_waitcnt lgkmcnt(0)")
    A("v_add_f32 v12, v12, v13\nv_add_f32 v14, v14, v15\nv_add_f32 v42, v12, v14")
    A("s_waitcnt vmcnt(0)")
    A("v_lshlrev_b32 v41, 16, v41")
    for t in range(5):
        frags(104 + 8 * t, 200 + 8 * t)

    A.label("L_stats")
    A("s_lshl_b32 s6, s82, 2\nv_mov_b32 v12, s6")
    lds_wait(12, L_KCNT, 13, "s_cmp_eq_u32", 4, 8, "kc")
    A(f"s_lshl_b32 s6, s82, 9\ns_add_u32 s6, s6, {L_SC}\nv_lshlrev_b32 v12, 3, v0\nv_add_u32 v12, s6, v12")
    for w in range(4):
        A(f"ds_read_b64 v[{160 + 2 * w}:{161 + 2 * w}], v12 offset:{2048 * w}")
    A("s_waitcnt lgkmcnt(0)")
    for i in range(8):
        unpack(168 + 2 * i, 169 + 2 * i, 160 + i)
    A("v_max3_f32 v12, v168, v169, v170")
    for i in range(171, 183, 2):
        A(f"v_max3_f32 v12, v12, v{i}, v{i + 1}")
    A("v_max_f32 v12, v12, v183")

    def wave_reduce(op, v, t):
        for r in (8, 4, 2, 1):
            A(f"{op}_dpp v{v}, v{v}, v{v} row_ror:{r} {DPPM}")
        for sw in ("v_permlane16_swap_b32", "v_permlane32_swap_b32"):
            A(f"v_mov_b32 v{t}, v{v}\n{sw} v{v}, v{t}\n{op} v{v}, v{v}, v{t}")

    wave_reduce("v_max_f32", 12, 14)
    for i in range(16):
        A(f"v_sub_f32 v{168 + i}, v{168 + i}, v12")
    for i in range(16):
        A(f"v_mul_f32 v{168 + i}, {f2u(LOG2E)}, v{168 + i}")
    for i in range(16):
        A(f"v_exp_f32 v{168 + i}, v{168 + i}")
    for step in (8, 4, 2, 1):
        for i in range(step):
            A(f"v_add_f32 v{168 + i}, v{168 + i}, v{168 + step + i}")
    A("v_mov_b32 v13, v168")
    wave_reduce("v_add_f32", 13, 14)
    A("v_min_u32 v12, -2, v12\nv_min_u32 v13, -2, v13")
    exec_set(1)
    A(f"buffer_store_dwordx2 v[12:13], v32, {WS_SRD}, s64 offen sc1")
    exec_set(FULL)
    A("v_and_b32 v14, 7, v0\nv_lshlrev_b32 v14, 3, v14\ns_mov_b32 s94, 0x8000")
    A.label("L_stpoll")
    A("s_sleep 32")
    A(f"buffer_load_dwordx2 v[12:13], v14, {WS_SRD}, s57 offen sc1")
    A("s_waitcnt vmcnt(0)")
    A("v_max_u32 v15, v12, v13\nv_cmp_eq_u32 vcc, -1, v15")
    A("s_cbranch_vccz L_stok")
    A("s_sub_u32 s94, s94, 1\ns_cmp_lg_u32 s94, 0\ns_cbranch_scc1 L_stpoll")
    A.label("L_stok")
    A("v_mov_b32 v16, v12")
    for m in ("quad_perm:[1,0,3,2]", "quad_perm:[2,3,0,1]", "row_half_mirror"):
        A(f"v_max_f32_dpp v16, v16, v16 {m} {DPPM}")
    A(f"v_sub_f32 v12, v12, v16\nv_mul_f32 v12, {f2u(LOG2E)}, v12\nv_exp_f32 v12, v12\nv_mul_f32 v17, v12, v13")
    for m in ("quad_perm:[1,0,3,2]", "quad_perm:[2,3,0,1]", "row_half_mirror"):
        A(f"v_add_f32_dpp v17, v17, v17 {m} {DPPM}")
    A("v_rcp_f32 v17, v17\nv_mov_b32 v18, 1\nv_mov_b32 v19, 0")
    A("s_lshl_b32 s6, s82, 4\nv_mov_b32 v12, s6")
    exec_set(1)
    A(f"ds_write_b128 v12, v[16:19] offset:{L_STAT}")
    exec_set(FULL)
    A("s_cmp_eq_u32 s88, 0\ns_cbranch_scc1 L_end")
    A("v_lshlrev_b32 v14, 2, v0\ns_mov_b32 s94, 0x8000\nv_mov_b32 v15, 0x01010101")
    A.label("L_allpoll")
    A(f"buffer_load_dword v12, v14, {DBG_SRD}, 0 offen sc1")
    A("s_waitcnt vmcnt(0)")
    A("v_cmp_ne_u32 vcc, v12, v15")
    A("s_cbranch_vccz L_allok")
    A("s_sleep 32")
    A("s_sub_u32 s94, s94, 1\ns_cmp_lg_u32 s94, 0\ns_cbranch_scc1 L_allpoll")
    A.label("L_allok")

    def gate(g, g3):
        A(f"s_lshl_b32 s6, s65, 6\ns_add_u32 s6, s6, {64 + 4 * g}\ns_cmp_eq_u32 s65, 3\ns_cselect_b32 s66, {256 - g3}, s6")
        lds_wait(32, L_PROG, 12, "s_cmp_ge_u32", "s66", 1, "gate")

    def gather(stem, n, base, loads, mask, check, after_sum):
        top, ok = A.fresh(stem + "_poll"), A.fresh(stem + "_ok")
        A(f"s_mov_b32 s67, {(1 << n) - 1}\ns_mov_b32 s94, 0x8000")
        if mask != FULL:
            exec_set(mask)
        A.label(top)
        for i in range(n):
            sk = A.fresh(stem + "_sk")
            A(f"s_bitcmp1_b32 s67, {i}\ns_cbranch_scc0 {sk}")
            A(loads[i])
            A.label(sk)
        A("s_waitcnt vmcnt(0)")
        after_sum()
        A(f"s_cbranch_vccz {ok}")
        A("s_mov_b32 s67, 0")
        for i in range(n):
            r = base + 4 * i
            A(f"v_max_u32 v{check}, v{r}, v{r + 1}\nv_max3_u32 v{check}, v{check}, v{r + 2}, v{r + 3}\nv_cmp_eq_u32 vcc, -1, v{check}")
            A(f"s_cmp_lg_u64 vcc, 0\ns_cselect_b32 s6, {1 << i}, 0\ns_or_b32 s67, s67, s6")
        A(f"s_cmp_eq_u32 s67, 0\ns_cbranch_scc1 {ok}")
        sl = A.fresh(stem + "_ns")
        A(f"s_cmp_eq_u32 s65, 3\ns_cbranch_scc1 {sl}\ns_sleep 32")
        A.label(sl)
        A(f"s_sub_u32 s94, s94, 1\ns_cmp_lg_u32 s94, 0\ns_cbranch_scc1 {top}")
        A.label(ok)

    def sum8():
        for i in range(4):
            for hf in (0, 2):
                a = 160 + 8 * i + hf
                A(f"v_pk_add_f32 v[{8 + 4 * i + hf}:{9 + 4 * i + hf}], v[{a}:{a + 1}], v[{a + 4}:{a + 5}]")
        for a, b in ((8, 12), (16, 20), (8, 16)):
            for hf in (0, 2):
                A(f"v_pk_add_f32 v[{a + hf}:{a + hf + 1}], v[{a + hf}:{a + hf + 1}], v[{b + hf}:{b + hf + 1}]")
        A("v_cmp_u_f32 s[68:69], v8, v9\nv_cmp_u_f32 vcc, v10, v11\ns_or_b64 vcc, vcc, s[68:69]")

    def D(t, f):
        return 192 + (2 * t + f) * 4

    A("v_lshrrev_b32 v43, 1, v1\nv_lshlrev_b32 v43, 5, v43\nv_lshl_add_u32 v43, v2, 3, v43\nv_and_b32 v12, 1, v1\nv_lshl_add_u32 v43, v12, 2, v43")
    A(f"s_mul_i32 s6, s82, 12\ns_add_u32 s6, s6, {L_XB}\nv_mul_u32_u24 v44, 96, v1\nv_lshl_add_u32 v44, v2, 2, v44\nv_add_u32 v44, s6, v44")
    A(f"v_mov_b32 v45, {L_XJOIN}")
    A("s_mov_b32 s65, 0")
    A("s_cmp_eq_u32 s88, 2\ns_cbranch_scc1 L_crole")

    A("v_lshlrev_b32 v46, 2, v43")
    A(f"v_mul_u32_u24 v47, 48, v0\nv_add_u32 v47, {L_XB}, v47\nv_lshlrev_b32 v48, 2, v0")
    A(f"s_mul_i32 s70, s92, {4 * 6144}\ns_add_u32 s70, s70, {PP}")
    A(f"s_mul_i32 s72, s89, 2560\ns_lshl_b32 s6, s90, 7\ns_add_u32 s72, s72, s6\ns_add_u32 s72, s72, {YY}")
    A.label("L_b")
    A("s_add_u32 s71, s70, 3072")
    gate(o["gb"], o["gb3"])
    gather("bp", 8, 160,
           [f"buffer_load_dwordx4 {vr(160 + 4 * i, 4)}, v46, {WS_SRD}, s{70 + i // 4} offen offset:{768 * (i % 4)} sc1" for i in range(8)],
           0x0FFF0FFF0FFF0FFF, 24, sum8)
    A("v_cvt_pk_bf16_f32 v24, v8, v9\nv_cvt_pk_bf16_f32 v25, v10, v11")
    exec_set(FULL)
    A(f"v_mov_b32_dpp v26, v24 row_shl:1 {DPPM}\nv_mov_b32_dpp v27, v25 row_shl:1 {DPPM}")
    for t in range(6):
        for f in range(2):
            A(f"v_mfma_f32_16x16x32_bf16 {vr(D(t, f), 4)}, v[24:27], {vr(64 + 8 * t + 4 * f, 4)}, 0")
    for rg in range(3):
        for f in range(2):
            A(f"v_add_f32 v{8 + 2 * rg + f}, v{D(2 * rg, f)}, v{D(2 * rg + 1, f) + 2}")
        exec_set(0xFFFF << (16 * rg))
        A(f"ds_write2_b32 v44, v{8 + 2 * rg}, v{9 + 2 * rg} offset0:0 offset1:12")
        if rg < 2:
            exec_set(FULL)
    exec_set(1)
    A("ds_add_rtn_u32 v12, v45, v33")
    A("s_waitcnt lgkmcnt(0)")
    A("v_readfirstlane_b32 s6, v12")
    A("s_cmp_lg_u32 s6, 3\ns_cbranch_scc1 L_bnext")
    exec_set((1 << 32) - 1)
    for i in range(3):
        A(f"ds_read_b128 {vr(8 + 4 * i, 4)}, v47 offset:{16 * i}")
    for i in range(3):
        A(f"s_waitcnt lgkmcnt({2 - i})")
        A(f"v_pk_add_f32 v[{8 + 4 * i}:{9 + 4 * i}], v[{8 + 4 * i}:{9 + 4 * i}], v[{10 + 4 * i}:{11 + 4 * i}]")
        if i == 1:
            A("v_pk_add_f32 v[8:9], v[8:9], v[12:13]")
    A("v_pk_add_f32 v[8:9], v[8:9], v[16:17]\nv_add_f32 v8, v8, v9\nv_min_u32 v8, -2, v8")
    for i in range(1, 4):
        A(f"v_mov_b32_dpp v{8 + i}, v8 row_shl:{i} {DPPM}")
    exec_set(0x11111111)
    A(f"buffer_store_dwordx4 v[8:11], v48, {WS_SRD}, s72 offen sc1")
    if o["stamps"]:
        exec_set(FULL)
        A("s_cmp_lg_u32 s65, 3\ns_cbranch_scc1 L_bnext")
        stamp(4, 12, 14)
    A.label("L_bnext")
    exec_set(FULL)
    A("s_add_u32 s65, s65, 1\ns_cmp_eq_u32 s65, 4\ns_cbranch_scc1 L_end")
    A(f"s_add_u32 s70, s70, 6144\ns_add_u32 s72, s72, {8 * 2560}")
    A("v_add_u32 v44, 1536, v44\nv_add_u32 v47, 1536, v47\nv_add_u32 v45, 4, v45")
    A("s_branch L_b")

    A.label("L_crole")
    C1 = -2.0 * 0.7978845608028654 * LOG2E
    C2 = C1 * 0.044715
    A("s_mul_i32 s6, s82, 160\nv_add_u32 v46, s6, v43\nv_lshlrev_b32 v49, 1, v46\nv_lshlrev_b32 v46, 2, v46")
    A(f"v_mul_u32_u24 v47, 48, v40\nv_add_u32 v47, {L_XB}, v47")
    A(f"s_mul_i32 s6, s82, 320\ns_add_u32 s6, s6, {L_H}\nv_lshl_add_u32 v50, v43, 1, s6")
    A(f"s_lshl_b32 s7, s82, 2\ns_add_u32 s7, s7, {L_XS}\nv_lshrrev_b32 v51, 5, v0\nv_lshl_add_u32 v51, v51, 4, s7")
    A(f"v_mov_b32 v52, {L_XS}\nv_mov_b32 v53, {f2u(C1)}\ns_mov_b32 s79, {f2u(C2)}")
    A("v_lshlrev_b32 v48, 3, v1")
    A("v_and_b32 v54, 7, v0\nv_lshlrev_b32 v55, 4, v54\nv_lshlrev_b32 v54, 2, v54")
    A("v_bfe_u32 v12, v0, 4, 1\nv_lshl_add_u32 v54, v12, 1, v54\nv_lshrrev_b32 v12, 5, v0\nv_add_u32 v54, v54, v12\nv_lshlrev_b32 v54, 1, v54")
    A("v_lshrrev_b32 v12, 3, v0\nv_mul_u32_u24 v12, 2560, v12\nv_add_u32 v55, v55, v12")
    A("s_lshl_b32 s7, s91, 6\ns_add_u32 s6, s6, s7\nv_add_u32 v56, s6, v54")
    A("s_mul_i32 s78, s82, 320\ns_add_u32 s78, s78, s7")
    A(f"buffer_load_ushort v57, v54, {B2_SRD}, s78 offen")
    A(f"s_mov_b32 s70, {YY}\ns_mov_b32 s74, 0")
    A(f"s_mul_i32 s75, s91, 2560\ns_mul_i32 s6, s82, 640\ns_add_u32 s75, s75, s6\ns_add_u32 s75, s75, {OP}")
    A(f"s_lshl_b32 s76, s78, 1\ns_add_u32 s76, s76, {OP}")
    A("s_waitcnt vmcnt(0)")
    A("v_lshlrev_b32 v57, 16, v57")
    A.label("L_c")
    A(f"buffer_load_dwordx2 v[58:59], v49, {X_SRD}, s74 offen")
    A("s_add_u32 s71, s70, 5120\ns_add_u32 s72, s70, 10240\ns_add_u32 s73, s70, 15360")
    A("v_mov_b32 v24, 0\nv_mov_b32 v25, 0")
    A("s_waitcnt vmcnt(0)")
    unpack(60, 61, 58)
    unpack(62, 63, 59)
    gate(o["gc"], o["gc3"])
    gather("cy", 8, 160,
           [f"buffer_load_dwordx4 {vr(160 + 4 * i, 4)}, v46, {WS_SRD}, s{70 + i // 2} offen offset:{2560 * (i % 2)} sc1" for i in range(8)],
           0x03FF03FF03FF03FF, 26, sum8)
    A("v_cvt_pk_bf16_f32 v12, v8, v9\nv_cvt_pk_bf16_f32 v13, v10, v11")
    unpack(8, 9, 12)
    unpack(10, 11, 13)
    A("v_pk_add_f32 v[8:9], v[8:9], v[60:61]\nv_pk_add_f32 v[10:11], v[10:11], v[62:63]")
    A("v_cvt_pk_bf16_f32 v24, v8, v9\nv_cvt_pk_bf16_f32 v25, v10, v11")
    A("ds_write_b64 v50, v[24:25]")
    exec_set(FULL)
    A(f"v_mov_b32_dpp v26, v24 row_shl:1 {DPPM}\nv_mov_b32_dpp v27, v25 row_shl:1 {DPPM}")
    stat_ops = [
        "v_dot2_f32_bf16 v14, v24, s62, 0\nv_dot2_f32_bf16 v15, v24, v24, 0",
        "v_dot2_f32_bf16 v14, v25, s62, v14\nv_dot2_f32_bf16 v15, v25, v25, v15",
        "",
        "v_permlane32_swap_b32 v14, v15\nv_add_f32 v14, v14, v15\nv_mov_b32 v15, v14",
        "v_permlane16_swap_b32 v14, v15\nv_add_f32 v14, v14, v15",
        f"v_add_f32_dpp v14, v14, v14 row_ror:8 {DPPM}",
        f"v_add_f32_dpp v14, v14, v14 row_ror:4 {DPPM}",
        f"v_add_f32_dpp v14, v14, v14 row_ror:2 {DPPM}",
        f"v_add_f32_dpp v14, v14, v14 row_ror:1 {DPPM}",
        "",
    ]
    for t in range(5):
        for f in range(2):
            A(f"v_mfma_f32_16x16x32_bf16 {vr(D(t, f), 4)}, v[24:27], {vr(64 + 8 * t + 4 * f, 4)}, 0")
            A(stat_ops[2 * t + f])
    for rg in range(2):
        for f in range(2):
            A(f"v_add_f32 v{8 + 2 * rg + f}, v{D(2 * rg, f)}, v{D(2 * rg + 1, f) + 2}")
    exec_set(0x0000000100000001)
    A("ds_write_b32 v51, v14")
    for rg in range(2):
        exec_set(0xFFFF << (16 * rg))
        A(f"ds_write2_b32 v44, v{8 + 2 * rg}, v{9 + 2 * rg} offset0:0 offset1:12")
    exec_set(0xFFFF << 32)
    A(f"ds_write2_b32 v44, v{D(4, 0)}, v{D(4, 1)} offset0:0 offset1:12")
    exec_set(1)
    A("ds_add_u32 v45, v33")
    exec_set(FULL)
    A("s_mov_b32 s94, 0x100000")
    A.label("L_cjoin")
    A("ds_read_b32 v28, v45")
    A("ds_read_b128 v[20:23], v52")
    A("ds_read_b128 v[36:39], v52 offset:16")
    for i in range(3):
        A(f"ds_read_b128 {vr(8 + 4 * i, 4)}, v47 offset:{16 * i}")
    A("s_waitcnt lgkmcnt(5)")
    A("v_readfirstlane_b32 s6, v28")
    A("s_cmp_eq_u32 s6, 4\ns_cbranch_scc1 L_cjoined")
    A("s_waitcnt lgkmcnt(0)")
    A("s_sub_u32 s94, s94, 1\ns_cmp_lg_u32 s94, 0\ns_cbranch_scc1 L_cjoin")
    A.label("L_cjoined")
    A("s_waitcnt lgkmcnt(3)")
    A("v_pk_add_f32 v[20:21], v[20:21], v[22:23]\nv_pk_add_f32 v[36:37], v[36:37], v[38:39]")
    A("v_add_f32 v20, v20, v21\nv_add_f32 v21, v36, v37")
    ln_scalars(20, 21, 22)
    A("s_waitcnt lgkmcnt(0)")
    for i in range(3):
        A(f"v_pk_add_f32 v[{8 + 4 * i}:{9 + 4 * i}], v[{8 + 4 * i}:{9 + 4 * i}], v[{10 + 4 * i}:{11 + 4 * i}]")
    A("v_pk_add_f32 v[8:9], v[8:9], v[12:13]\nv_pk_add_f32 v[8:9], v[8:9], v[16:17]\nv_add_f32 v8, v8, v9")
    A("v_fma_f32 v8, -v20, v42, v8\nv_mul_f32 v8, v8, v21")
    rne(8)
    A("v_add_f32 v8, v8, v41")
    rne(8)
    A("v_mul_f32 v9, v8, v8\nv_fma_f32 v9, v9, s79, v53\nv_mul_f32 v9, v9, v8\nv_exp_f32 v9, v9\nv_add_f32 v9, 1.0, v9\nv_rcp_f32 v9, v9\nv_mul_f32 v8, v8, v9")
    A(f"v_mov_b32_dpp v9, v8 row_shl:1 {DPPM}")
    A("v_cvt_pk_bf16_f32 v24, v8, v9")
    for i in range(1, 4):
        A(f"v_mov_b32_dpp v{24 + i}, v24 row_shl:{2 * i} {DPPM}")
    for t in range(5):
        for f in range(2):
            A(f"v_mfma_f32_16x16x32_bf16 {vr(D(t, f), 4)}, v[24:27], {vr(104 + 8 * t + 4 * f, 4)}, 0")
    for t in range(5):
        r = 160 + 4 * t
        A(f"v_min_u32 v{r}, -2, v{D(t, 0)}\nv_min_u32 v{r + 1}, -2, v{D(t, 1)}")
        if t > 0:
            q = r - 4
            A(f"v_mov_b32_dpp v{q + 2}, v{q} row_shl:1 {DPPM}\nv_mov_b32_dpp v{q + 3}, v{q + 1} row_shl:1 {DPPM}")
    A(f"v_mov_b32_dpp v178, v176 row_shl:1 {DPPM}\nv_mov_b32_dpp v179, v177 row_shl:1 {DPPM}")
    exec_set(0x5555)
    for t in range(5):
        A(f"buffer_store_dwordx4 {vr(160 + 4 * t, 4)}, v48, {WS_SRD}, s75 offen offset:{128 * t} sc1")
    exec_set(FULL)
    if o["stamps"]:
        A("s_cmp_lg_u32 s65, 3\ns_cbranch_scc1 L_nostamp5")
        A("s_cmp_lg_u32 s82, 0\ns_cbranch_scc1 L_nostamp5")
        stamp(5, 12, 14)
        A.label("L_nostamp5")
    A("s_cmp_ge_u32 s91, 5\ns_cbranch_scc1 L_cnext")
    A("ds_read_u16 v29, v56")
    for i in range(5):
        A(f"s_add_u32 s{83 + i}, s76, {20480 * (i + 1)}")
    A("s_cmp_eq_u32 s65, 3\ns_cbranch_scc1 L_dgo")
    gate(o["gd"], 0)
    A.label("L_dgo")
    A("s_waitcnt lgkmcnt(0)")
    A("v_lshlrev_b32 v29, 16, v29")

    def dsum():
        for i in range(3):
            for hf in (0, 2):
                a = 192 + 8 * i + hf
                A(f"v_pk_add_f32 v[{8 + 4 * i + hf}:{9 + 4 * i + hf}], v[{a}:{a + 1}], v[{a + 4}:{a + 5}]")
        for b in (12, 16):
            for hf in (0, 2):
                A(f"v_pk_add_f32 v[{8 + hf}:{9 + hf}], v[{8 + hf}:{9 + hf}], v[{b + hf}:{b + hf + 1}]")
        A("v_permlane32_swap_b32 v8, v9\nv_permlane32_swap_b32 v10, v11")
        A("v_add_f32 v8, v8, v9\nv_add_f32 v10, v10, v11")
        A("v_permlane16_swap_b32 v8, v10\nv_add_f32 v8, v8, v10")
        A(f"v_add_f32_dpp v8, v8, v8 row_ror:8 {DPPM}")
        A("v_cmp_u_f32 vcc, v8, v8")

    gather("do", 6, 192,
           [f"buffer_load_dwordx4 {vr(192 + 4 * i, 4)}, v55, {WS_SRD}, s{76 if i == 0 else 82 + i} offen sc1" for i in range(6)],
           FULL, 26, dsum)
    rne(8)
    A("v_add_f32 v8, v8, v57")
    rne(8)
    A("v_add_f32 v8, v8, v29\nv_cvt_pk_bf16_f32 v8, v8, v8")
    A("s_add_u32 s6, s78, s74")
    exec_set(0x00FF00FF00FF00FF)
    A(f"buffer_store_short v8, v54, {OUT_SRD}, s6 offen")
    exec_set(FULL)
    if o["stamps"]:
        A("s_cmp_lg_u32 s65, 3\ns_cbranch_scc1 L_nostamp6")
        A("s_cmp_lg_u32 s82, 0\ns_cbranch_scc1 L_nostamp6")
        stamp(6, 12, 14)
        A.label("L_nostamp6")
    A.label("L_cnext")
    A("s_add_u32 s65, s65, 1\ns_cmp_eq_u32 s65, 4\ns_cbranch_scc1 L_end")
    A(f"s_add_u32 s70, s70, {8 * 2560}\ns_add_u32 s74, s74, 1280\ns_add_u32 s75, s75, {48 * 2560}\ns_add_u32 s76, s76, {48 * 2560}")
    A("v_add_u32 v44, 1536, v44\nv_add_u32 v47, 1536, v47\nv_add_u32 v45, 4, v45\nv_add_u32 v51, 32, v51\nv_add_u32 v52, 32, v52")
    A("s_branch L_c")
    A.label("L_end")
    A("s_endpgm")

    body, nn = pad(A.lines)
    lds = o["lds"] or (L_END + 255) // 256 * 256
    head = open("cdna_kernels/" + NAME + ".s.ref").read().split("; Override launch")[0]
    out = head
    out += f"; @launch grid=(256,1,1) block=(512,1,1) lds={lds}\n"
    out += '.amdgcn_target "amdgcn-amd-amdhsa--gfx950"\n.text\n'
    out += f".globl {NAME}_kernel\n.p2align 8\n.type {NAME}_kernel,@function\n{NAME}_kernel:\n"
    out += "\n".join(("" if l.endswith(":") else "    ") + l for l in body) + "\n"
    out += f""".section .rodata,"a"
.p2align 6
.amdhsa_kernel {NAME}_kernel
  .amdhsa_next_free_vgpr 256
  .amdhsa_next_free_sgpr 102
  .amdhsa_accum_offset 256
  .amdhsa_group_segment_fixed_size 0
  .amdhsa_kernarg_size 104
  .amdhsa_user_sgpr_count 2
  .amdhsa_user_sgpr_kernarg_segment_ptr 1
  .amdhsa_system_sgpr_workgroup_id_x 1
.end_amdhsa_kernel
"""
    return out, lds, nn


if __name__ == "__main__":
    asm, lds, nn = gen()
    open("cdna_kernels/" + NAME + ".s", "w").write(asm)
    print("lds", lds, "nops inserted", nn, "lines", asm.count("\n"))
```

```python
import sys
from gen import gen, NAME
from build import build
def mk(tag, **kw):
    asm, lds, nn = gen(**kw)
    build(asm, tag, f"{tag}.co", NAME + "_kernel")
    return f"work/{tag}.co:{NAME}_kernel:256:512:{lds}"
if __name__ == "__main__":
    print(mk("k0"))
    print(mk("k0s", stamps=True))
```

```python
import struct
import sys
from asmlib import Asm, pad

NAME = "sequential_preLN__mha_block_cached__dense_activation_gelu__decode"


def f2u(x):
    return "0x%08x" % struct.unpack("<I", struct.pack("<f", x))[0]


LOG2E = 1.4426950408889634
SCALE = 192 ** -0.5
EP = 0
QP = 256
ST = QP + 32 * 5 * 3072
PP = ST + 32 * 4 * 128
YY = PP + 32 * 4 * 8 * 768
OP = YY + 4 * 8 * 2560
PA = OP + 4 * 48 * 2560
OO = PA + 3072
HH = OO + 32 * 3 * 768
RK = (HH + 3 * 2560 + 511) // 512 * 512
WSEND = RK + 8 * 512
L_QJOIN, L_PROG, L_CSJOIN = 0, 4, 8
L_KCNT, L_VCNT, L_XJOIN = 16, 32, 48
L_STAT = 64
L_GO = 128
L_QRDY = 132
L_MODE = 136
L_QGO = 140
L_DEEP = 144
L_CLAIM = 148
L_Q = 256
L_SC = 2048
SCS = 2112
L_OL = L_SC + 4 * SCS
L_XB = L_OL + 24576
L_XS = L_XB + 4096
L_CS = L_XS + 128
L_H = L_CS + 512
L_OD = L_H + 5120
L_END = L_OD + 9216
SEG = 3145728
DPPM = "row_mask:0xf bank_mask:0xf"
TMUL, TADD = 0x9E3779B1, 0x5BD1E995

DEFAULTS = dict(stamps=0, gb3=8, gc3=0, gb=10, gh=16, gc=44, bsleep3=0, csleep3=0, dsleep=0, psleep=16, gsleep=8,
                qs0=8, wb=2, wc=4, wnt="nt", lds=None, noroles=False, nohelp=False, prio=2, comp=False,
                slow=False, sbar=2, hbar="issue", npre=9, pf="", wonly=False, wlate=False, deep=0, ab=0, lnt=False, snt=False, xnt=False, qsleep=2, preq=True, preo=True, prep=23, rnt=True, hnt=True, pfl='sc1 nt', preg=True, knt='nt', vnt='nt', prem=False, qnt='', ont='', pnt='', qld='sc1', noqp=False, rank=None, skipw='', l2pf=None, pfth=4, wgate=0, wexp=0, touch=False, epf=None, rwf=None, epfw='o12', rwfc=None, conce=False, clate=0, cfl='', csl=16, twop=False, nocen=False, lag=None, lagx=7, tight=12, fbb=None, fbc=None, fixd=None, tlb=0, xs=False, hl=None, h2=(192, 196, 8, 96, 0, 7), cex=8, bex=0, dync=4, dsl=3, dk=0, dcex=0, cy2=True, c2s=8, r2d=False, cfast=True, lsl=8, lfl='sc1', lnp=False, lnw=False, dsleep0=8, yst='sc1', yld='sc1', ost='sc1', old='sc1', pld='sc1')
ROLES = [10, 11, 0, 1, 12, 13, 2, 3, 14, 4, 5, 6, 15, 7, 8, 9]


def vr(a, n):
    return f"v[{a}:{a + n - 1}]" if n > 1 else f"v{a}"


def gen(**kw):
    o = dict(DEFAULTS)
    o.update(kw)
    A = Asm()
    cold = []
    near = cold
    K_SRD, V_SRD, WS_SRD = "s[8:11]", "s[12:15]", "s[16:19]"
    X_SRD, WQ_SRD, WO_SRD, W1_SRD, W2_SRD = "s[20:23]", "s[24:27]", "s[28:31]", "s[32:35]", "s[36:39]"
    B1_SRD, B2_SRD, OUT_SRD, DBG_SRD = "s[40:43]", "s[44:47]", "s[48:51]", "s[52:55]"

    def srd(d, p, size):
        A(f"s_mov_b32 s{d}, s{p}\ns_and_b32 s{d + 1}, s{p + 1}, 0xffff\ns_mov_b32 s{d + 2}, {size}\ns_mov_b32 s{d + 3}, 0x20000")

    def exec_set(mask):
        lo, hi = mask & 0xFFFFFFFF, mask >> 32
        if mask == (1 << 64) - 1:
            A("s_mov_b64 exec, -1")
        elif hi == 0 and lo < 0x80000000:
            A(f"s_mov_b64 exec, {lo if lo <= 64 else hex(lo)}")
        else:
            A(f"s_mov_b32 exec_lo, {hex(lo)}\ns_mov_b32 exec_hi, {hex(hi)}")

    FULL = (1 << 64) - 1

    def dual(emit, fast):
        if fast == "sc1":
            emit("sc1")
            return
        sl, back = A.fresh("dev"), A.fresh("devb")
        A(f"s_cmp_lg_u32 s64, 0\ns_cbranch_scc1 {sl}")
        emit(fast)
        A.label(back)
        keep = A.lines
        A.lines = []
        A.label(sl)
        emit("sc1")
        A(f"s_branch {back}")
        cold.extend(A.lines)
        A.lines = keep

    def stamp(slot, t0, t1, mode=0):
        if not o["stamps"] or (mode and o["stamps"] != mode):
            return
        A("s_memrealtime s[96:97]")
        A("s_add_u32 s98, s80, 0x40000000\ns_addc_u32 s99, s81, 0")
        A(f"s_lshl_b32 s95, s2, 6\ns_add_u32 s95, s95, {slot * 8}")
        A("s_waitcnt lgkmcnt(0)")
        exec_set(1)
        A(f"v_mov_b32 v{t0}, s96\nv_mov_b32 v{t0 + 1}, s97\nv_mov_b32 v{t1}, s95")
        A(f"global_store_dwordx2 v{t1}, v[{t0}:{t0 + 1}], s[98:99]")
        exec_set(FULL)

    def lds_wait(addr_v, off, tmp, cmp_op, rhs, sleep, stem):
        top, done = A.fresh(stem), A.fresh(stem + "_ok")
        A("s_mov_b32 s94, 0x40000")
        A.label(top)
        A(f"ds_read_b32 v{tmp}, v{addr_v} offset:{off}")
        A("s_waitcnt lgkmcnt(0)")
        A(f"v_readfirstlane_b32 s93, v{tmp}")
        A(f"{cmp_op} s93, {rhs}")
        A(f"s_cbranch_scc1 {done}")
        if sleep:
            A(f"s_sleep {sleep}")
        A(f"s_sub_u32 s94, s94, 1\ns_cmp_lg_u32 s94, 0\ns_cbranch_scc1 {top}")
        A.label(done)

    def unpack(lo, hi, src):
        A(f"v_lshlrev_b32 v{lo}, 16, v{src}\nv_and_b32 v{hi}, 0xffff0000, v{src}")

    def rne(v):
        A(f"v_cvt_pk_bf16_f32 v{v}, v{v}, v{v}\nv_and_b32 v{v}, 0xffff0000, v{v}")

    def tagbyte(dst, off_v):
        A(f"v_lshrrev_b32 v{dst}, 1, v{off_v}\nv_and_b32 v{dst}, 24, v{dst}\nv_bfe_u32 v{dst}, s58, v{dst}, 8")

    def launch_tag():
        A(f"s_mul_i32 s58, s57, {hex(TMUL)}\ns_add_u32 s58, s58, {hex(TADD)}\ns_mov_b32 s59, 0xffffff00")

    def closing_count(d):
        if not o["comp"]:
            A(f"s_mov_b32 s{d}, 2")
            return
        A(f"s_cmp_lt_u32 s5, 4\ns_cselect_b32 s6, 1, 2\ns_cmp_ge_u32 s5, 6\ns_cselect_b32 s7, 4, 2")
        A(f"s_xor_b32 s{d}, s4, s5\ns_bitcmp1_b32 s{d}, 0\ns_cselect_b32 s{d}, s7, s6")

    A("s_cmp_ge_u32 s2, 256\ns_cbranch_scc1 L_end")
    A("s_load_dwordx16 s[56:71], s[0:1], 0")
    A("s_load_dwordx8 s[72:79], s[0:1], 64")
    A("s_load_dwordx2 s[80:81], s[0:1], 96")
    A("v_lshrrev_b32 v1, 6, v0\nv_and_b32 v0, 63, v0")
    A("v_readfirstlane_b32 s3, v1")
    A("s_and_b32 s4, s2, 7\ns_lshl_b32 s4, s4, 5\ns_lshr_b32 s2, s2, 3\ns_add_u32 s2, s2, s4")
    A("s_lshr_b32 s4, s2, 3\ns_and_b32 s5, s2, 7")
    A("s_cmp_ge_u32 s3, 4\ns_cbranch_scc1 L_helper")

    XS, YS = 40, 64
    OFFS = [0, 128, 256, 3072, 3200, 3328]

    def issue(slot, srd_name, soff):
        for i in range(6):
            A(f"buffer_load_dwordx4 {vr(slot + 4 * i, 4)}, v1, {srd_name}, {soff} offen offset:{OFFS[i]} {o['knt'] if srd_name == K_SRD else o['vnt']}")

    def kcomp(R, ldsoff):
        for i in range(6):
            for c, (ro, qo) in enumerate([(0, 0), (6, 6), (12, 0), (18, 6)]):
                A(f"v_dot2_f32_bf16 v{28 + c}, v{R + ro + i}, v{8 + qo + i}, {'0' if i == 0 else 'v%d' % (28 + c)}")
        A("v_add_f32 v28, v28, v29\nv_add_f32 v30, v30, v31")
        for m in ("quad_perm:[1,0,3,2]", "quad_perm:[2,3,0,1]", "row_half_mirror"):
            A(f"v_add_f32_dpp v28, v28, v28 {m} {DPPM}\nv_add_f32_dpp v30, v30, v30 {m} {DPPM}")
        A("v_cvt_pk_bf16_f32 v28, v28, v30")
        unpack(29, 30, 28)
        A(f"v_mul_f32 v29, {f2u(SCALE)}, v29\nv_mul_f32 v30, {f2u(SCALE)}, v30")
        A("v_cvt_pk_bf16_f32 v28, v29, v30")
        A(f"ds_write_b32 v2, v28 offset:{ldsoff}")

    def load_q():
        for j in range(3):
            A(f"ds_read_b128 {vr(8 + 4 * j, 4)}, v34 offset:{128 * j}")
        A("v_add_u32 v34, 384, v34")
        A("s_waitcnt lgkmcnt(0)")

    def vprep():
        A("s_waitcnt lgkmcnt(0)")
        unpack(29, 30, 28)
        A("v_sub_f32 v29, v29, v36\nv_sub_f32 v30, v30, v36")
        A(f"v_mul_f32 v29, {f2u(LOG2E)}, v29\nv_mul_f32 v30, {f2u(LOG2E)}, v30")
        A("v_exp_f32 v29, v29\nv_exp_f32 v30, v30")
        A("v_mul_f32 v29, v29, v37\nv_mul_f32 v30, v30, v37")
        A("v_cvt_pk_bf16_f32 v29, v29, v29\nv_cvt_pk_bf16_f32 v30, v30, v30")
        for i in range(4):
            A(f"v_and_b32 v{20 + i}, v29, v{4 + i}\nv_and_b32 v{24 + i}, v30, v{4 + i}")

    def vmfma(R):
        for g in range(2):
            for j in range(3):
                A(f"v_mfma_f32_16x16x32_bf16 {vr(8 + 4 * j, 4)}, {vr(R + 12 * g + 4 * j, 4)}, {vr(20 + 4 * g, 4)}, {vr(8 + 4 * j, 4)}")

    def lds_inc(off_v):
        exec_set(1)
        A(f"ds_add_u32 v{off_v}, v33")
        exec_set(FULL)

    def fetch_stat():
        top, done = A.fresh("stat"), A.fresh("stat_ok")
        A("s_mov_b32 s94, 0x40000")
        A.label(top)
        A(f"ds_read_b128 v[36:39], v35 offset:{L_STAT}")
        A("s_waitcnt lgkmcnt(0)")
        A("v_readfirstlane_b32 s93, v38")
        A(f"s_cmp_lg_u32 s93, 0\ns_cbranch_scc1 {done}")
        A("s_sleep 2")
        A(f"s_sub_u32 s94, s94, 1\ns_cmp_lg_u32 s94, 0\ns_cbranch_scc1 {top}")
        A.label(done)
        A("v_add_u32 v35, 16, v35")

    A(f"s_setprio {o['prio']}")
    A("v_lshrrev_b32 v2, 3, v0\nv_mul_u32_u24 v1, 384, v2\nv_and_b32 v3, 7, v0\nv_lshlrev_b32 v34, 4, v3\nv_add_u32 v1, v1, v34")
    PS, PB, JMP = 393216, 6144, 32 * SEG - 7 * 393216
    A(f"s_mul_i32 s82, s4, {SEG}\ns_lshl_b32 s6, s5, 2\ns_add_u32 s6, s6, s3\ns_mul_i32 s6, s6, 12288\ns_add_u32 s82, s82, s6")
    A(f"s_mov_b32 s85, s82\ns_mov_b32 s88, {PS}")
    A("s_waitcnt lgkmcnt(0)")
    srd(8, 58, 402653184)
    issue(64, K_SRD, "s82")
    if o["stamps"]:
        A("s_memrealtime s[20:21]")
    A(f"s_load_dword s57, s[80:81], {EP}")
    srd(12, 60, 402653184)
    srd(16, 80, WSEND)
    def setup():
        closing_count(89)
        if o["epf"] is not None:
            srd(40, 64, 6144 * 640 * 2)
            srd(44, 68, 640 * 1536 * 2)
            srd(48, 72, 1536 * 640 * 2)
        A("s_and_b32 s6, s4, 1\ns_sub_u32 s6, s6, s5\ns_mul_i32 s6, s6, 49152\ns_add_u32 s90, s85, s6")
        A(f"s_add_u32 s90, s90, {3 * 32 * SEG + 7 * PS + PB}\ns_add_u32 s91, s90, {2 * 49152}")
        A(f"s_mul_i32 s6, s3, {SCS}\ns_add_u32 s6, s6, {L_SC}\nv_lshlrev_b32 v2, 2, v2\nv_add_u32 v2, s6, v2")
        A(f"v_min_u32 v28, 23, v0\nv_lshl_add_u32 v28, v28, 2, s6\nv_mov_b32 v29, 0xff80ff80")
        A("ds_write_b32 v28, v29 offset:2016")
        A(f"v_add_u32 v34, {L_Q}, v34")
        A("v_and_b32 v28, 1, v0\nv_cmp_eq_u32 vcc, 0, v28\nv_mov_b32 v29, 0xffff0000\nv_mov_b32 v30, 0xffff\nv_cndmask_b32 v28, v29, v30, vcc")
        A("v_lshrrev_b32 v29, 1, v3")
        for i in range(4):
            A(f"v_cmp_eq_u32 vcc, {i}, v29\nv_cndmask_b32 v{4 + i}, 0, v28, vcc")
        A("v_lshlrev_b32 v3, 4, v3\nv_bfe_u32 v28, v0, 4, 1\nv_lshlrev_b32 v28, 7, v28\nv_add_u32 v3, v3, v28")
        A("v_lshrrev_b32 v28, 5, v0\nv_mul_u32_u24 v28, 768, v28\nv_add_u32 v3, v3, v28")
        A(f"s_mul_i32 s6, s3, 1536\ns_add_u32 s6, s6, {L_OL}\nv_add_u32 v3, s6, v3")
        A(f"v_mov_b32 v33, 1\nv_mov_b32 v32, {L_KCNT}\nv_mov_b32 v35, 0\nv_mov_b32 v31, 0")

    def koff(n):
        A(f"s_add_u32 s83, s85, {(n >> 1) * PS + (n & 1) * PB}")

    S = lambda i: 64 + 24 * i
    npre = o["npre"]
    where = {0: S(0)}
    free = [S(i) for i in range(1, npre - 1)] + [XS]
    if o["sbar"] == 0:
        A("s_barrier")
        setup()
    for n in range(1, npre):
        koff(n)
        if n <= o["deep"]:
            if n > 1:
                A("s_waitcnt vmcnt(6)")
        else:
            A("s_waitcnt vmcnt(0)")
        where[n] = free.pop(0)
        issue(where[n], K_SRD, "s83")
        if o["sbar"] == n:
            A("s_barrier")
            setup()
    assert where[npre - 1] == XS and not free
    if o["stamps"] == 3:
        A("s_memrealtime s[24:25]")
    if o["stamps"] == 5:
        A("s_memrealtime s[30:31]")
    lds_wait(35, L_QRDY, 28, "s_cmp_ge_u32", 4, 1, "qrdy")
    if o["stamps"] == 3:
        A("s_memrealtime s[26:27]")
    load_q()
    last = {9: 12, 7: 10, 5: 8}[npre]
    nxt = npre
    quota = 1
    arrived = list(range(npre - 1))
    inflight = npre - 1
    while True:
        k = 0
        while k < quota and arrived:
            prefer = nxt == last and any(where[n] == XS for n in arrived)
            n = [n for n in arrived if where[n] == XS][0] if prefer else arrived[0]
            arrived.remove(n)
            kcomp(where[n], 32 * n)
            free.append(where[n])
            k += 1
        if nxt > last:
            if not arrived:
                break
            quota = 99
            continue
        if nxt == last:
            assert XS in free
            A(f"s_add_u32 s82, s85, {(last >> 1) * PS}")
            A("s_waitcnt vmcnt(0)")
            free.remove(XS)
            issue(XS, K_SRD, "s82")
        else:
            koff(nxt)
            A("s_waitcnt vmcnt(0)")
            where[nxt] = [f for f in free if f != XS][0]
            free.remove(where[nxt])
            issue(where[nxt], K_SRD, "s83")
        arrived.append(inflight)
        inflight = nxt
        nxt += 1
        quota = 3
    A(f"v_add_u32 v2, {last * 32}, v2")
    A(f"s_mov_b32 s84, {last // 2}")
    if o["stamps"] == 3:
        A("s_memrealtime s[28:29]")
    endp = 31
    VA, VB = 88, 112
    A.label("L_k")
    A(f"s_add_u32 s83, s82, {PB}")
    A("s_waitcnt vmcnt(0)")
    issue(YS, K_SRD, "s83")
    kcomp(XS, 0)
    A("s_add_u32 s84, s84, 1\ns_and_b32 s6, s84, 7")
    A(f"s_cmp_eq_u32 s6, 0\ns_cselect_b32 s7, {JMP}, s88\ns_add_u32 s82, s82, s7")
    A(f"s_cmp_eq_u32 s84, {endp}\ns_cbranch_scc1 L_k_last")
    A("s_waitcnt vmcnt(0)")
    issue(XS, K_SRD, "s82")
    kcomp(YS, 32)
    A("v_add_u32 v2, 64, v2")
    A("s_cmp_lg_u32 s6, 0\ns_cbranch_scc1 L_k")
    if o["stamps"] == 5:
        A("s_mov_b64 s[24:25], s[26:27]\ns_mov_b64 s[26:27], s[28:29]\ns_memrealtime s[28:29]")
    lds_inc(32)
    A("v_add_u32 v32, 4, v32")
    load_q()
    A("s_branch L_k")
    A.label("L_k_last")
    A(f"s_add_u32 s83, s82, {PB}")
    A("s_waitcnt vmcnt(0)")
    issue(XS, K_SRD, "s82")
    kcomp(YS, 32)
    A("s_mov_b32 s82, s85")
    CL = ["s83", "s90", "s91"]
    for i in range(4):
        cur, nx = (XS, YS) if i % 2 == 0 else (YS, XS)
        if i < 2:
            A(f"s_cmp_eq_u32 s89, {i + 1}")
        A("s_waitcnt vmcnt(0)")
        if i < 2:
            A(f"s_cbranch_scc1 L_kv{i}")
        if i < 3:
            issue(nx, K_SRD, CL[i])
        if i < 2:
            A(f"s_branch L_kc{i}")
            A.label(f"L_kv{i}")
        if i != 2:
            issue(VA, V_SRD, "s82")
        A.label(f"L_kc{i}")
        kcomp(cur, 64 + 32 * i)
        if i < 2:
            A("s_cbranch_scc1 L_kdone")
    A.label("L_kdone")
    lds_inc(32)
    if o["stamps"]:
        A("s_memrealtime s[22:23]")
    A(f"s_mul_i32 s6, s3, {SCS}\ns_add_u32 s6, s6, {L_SC}\nv_lshrrev_b32 v2, 3, v0\nv_lshl_add_u32 v2, v2, 2, s6")
    A(f"v_mov_b32 v32, {L_VCNT}\nv_mov_b32 v31, {L_PROG}")
    A("v_lshlrev_b32 v34, 4, v0")
    for i in range(12):
        A(f"v_mov_b32 v{8 + i}, 0")
    A(f"s_lshl_b32 s86, s4, 5\ns_add_u32 s86, s86, s5\ns_mul_i32 s86, s86, 768\ns_add_u32 s86, s86, {PP + 3 * 6144}")
    A("s_mov_b32 s84, 0")
    A(f"s_cmp_eq_u32 s3, 0\ns_cselect_b32 s92, {o['prep']}, 0")
    launch_tag()
    tagbyte(140, 34)
    fetch_stat()
    A("s_sub_u32 s64, s93, 1")
    A("ds_read_b32 v28, v2")
    vprep()
    def flush():
        exec_set(0xFF00FF0000FF00FF)
        for j in range(3):
            A(f"ds_write_b128 v3, {vr(8 + 4 * j, 4)} offset:{256 * j}")
        exec_set(1)
        A("ds_add_rtn_u32 v28, v32, v33")
        A("ds_add_u32 v31, v33")

    if o["rank"] or o["hl"] or o["h2"] or o["fixd"]:
        A("s_mov_b32 s91, 0")
    if o["lag"]:
        A(f"s_lshl_b32 s6, s3, 3\ns_add_u32 s6, s6, s5\ns_cmp_eq_u32 s6, {o['lagx']}\ns_cselect_b32 s52, {o['lag'][0]}, 0")
        A(f"s_lshl_b32 s53, s4, 2\ns_add_u32 s53, s53, {RK}\ns_lshr_b32 s54, s2, 5\ns_lshl_b32 s54, s54, 9\ns_add_u32 s54, s54, {RK}\ns_mov_b32 s55, 0")
        A("v_lshrrev_b32 v142, 5, v0\nv_lshlrev_b32 v142, 24, v142\nv_lshl_add_u32 v142, v0, 2, v142\nv_lshlrev_b32 v143, 9, v0\nv_mov_b32 v148, s58")
    A.label("L_v")
    if o["rank"] or o["hl"] or o["h2"] or o["fixd"]:
        A("s_add_u32 s6, s84, s91\ns_cmp_ge_u32 s6, 32\ns_cbranch_scc1 L_deep")
    if o["lag"]:
        assert o["lag"][2] >= 24
        A(f"s_cmp_ge_u32 s84, {o['lag'][2]}\ns_cselect_b32 s7, s54, {WSEND}\ns_cselect_b32 s6, s55, 0")
        A(f"s_cmp_ge_u32 s6, {o['lag'][1]}\ns_cbranch_scc1 L_deep")
    A("s_waitcnt vmcnt(0)")
    A(f"s_add_u32 s83, s82, {PB}")
    issue(VB, V_SRD, "s83")
    if o["lag"]:
        A(f"buffer_load_dword v141, v142, {WS_SRD}, s7 offen sc1")
    A("ds_read_b32 v28, v2 offset:32")
    vmfma(VA)
    lds_inc(31)
    vprep()
    A("s_add_u32 s84, s84, 1\ns_and_b32 s6, s84, 7")
    A(f"s_cmp_eq_u32 s6, 0\ns_cselect_b32 s7, {JMP}, s88\ns_add_u32 s82, s82, s7")
    A("v_add_u32 v2, 64, v2")
    A(f"s_cmp_eq_u32 s84, {endp}")
    A("s_cbranch_scc1 L_v_last")
    A("s_waitcnt vmcnt(0)")
    issue(VA, V_SRD, "s82")
    if o["prep"]:
        A("s_cmp_eq_u32 s84, s92\ns_cbranch_scc1 L_prep")
        A.label("L_prepd")
        cold.extend(["L_prep:", "s_mov_b32 exec_hi, 0xffff", f"buffer_load_dwordx4 v[144:147], v34, {WS_SRD}, s86 offen {o['pfl']}",
                     "s_mov_b32 exec_hi, -1", "s_branch L_prepd"])
    if o["lag"]:
        A("s_cmp_eq_u32 s84, s52\ns_cbranch_scc1 L_post")
        A.label("L_posted")
        cold.extend(["L_post:", "s_mov_b64 exec, 0xff", f"buffer_store_dword v148, v143, {WS_SRD}, s53 offen sc1",
                     "s_mov_b64 exec, -1", "s_branch L_posted"])
        A("v_cmp_eq_u32 vcc, s58, v141")
    vmfma(VB)
    if o["lag"]:
        A("s_bcnt1_i32_b64 s55, vcc")
    A("s_cmp_eq_u32 s6, 0\ns_cbranch_scc1 L_flush")
    A("ds_read_b32 v28, v2")
    if o["rank"] or o["hl"] or o["h2"] or o["fixd"]:
        A(f"ds_read_b32 v141, v31 offset:{L_DEEP - L_PROG}")
    lds_inc(31)
    vprep()
    if o["rank"] or o["hl"] or o["h2"] or o["fixd"]:
        A("v_readfirstlane_b32 s91, v141")
    A("s_branch L_v")
    if o["rank"] or o["lag"] or o["hl"] or o["h2"] or o["fixd"]:
        VC, VD = 192, 216
        wide = bool(o['h2'] and (o['h2'][5] > 8 or o['cex'] > 8))
        A.label("L_deep")
        A(f"s_add_u32 s83, s82, {PB}")
        issue(VB, V_SRD, "s83")
        for nm, (c0, c1, n0, n1) in (("1", (VA, VB, VC, VD)), ("2", (VC, VD, VA, VB))):
            A.label("L_deep" + nm)
            if wide:
                A(f"s_add_u32 s84, s84, 1\ns_and_b32 s6, s84, 7\ns_cselect_b32 s7, s88, {JMP}\ns_add_u32 s82, s82, s7")
                A(f"s_add_u32 s83, s82, {PB}\ns_cmp_eq_u32 s84, 32")
            else:
                A(f"s_add_u32 s84, s84, 1\ns_add_u32 s82, s82, s88\ns_add_u32 s83, s82, {PB}\ns_cmp_eq_u32 s84, 32")
            A("ds_read_b32 v28, v2 offset:32")
            A("s_waitcnt vmcnt(0)")
            A(f"s_cbranch_scc1 L_deepz{nm}")
            issue(n0, V_SRD, "s82")
            issue(n1, V_SRD, "s83")
            vmfma(c0)
            lds_inc(31)
            vprep()
            A("ds_read_b32 v28, v2 offset:64")
            vmfma(c1)
            if wide:
                A(f"s_cmp_eq_u32 s6, 0\ns_cbranch_scc1 L_deepf{nm}")
            lds_inc(31)
            vprep()
            A("v_add_u32 v2, 64, v2")
        A("s_branch L_deep1")
        for nm, nx in (("1", "2"), ("2", "1")) if wide else ():
            A.label("L_deepf" + nm)
            A("s_waitcnt lgkmcnt(0)")
            flush()
            exec_set(FULL)
            A("s_waitcnt lgkmcnt(0)")
            for i in range(12):
                A(f"v_mov_b32 v{8 + i}, 0")
            A("v_add_u32 v3, 6144, v3\nv_add_u32 v32, 4, v32\nv_add_u32 v2, 64, v2")
            fetch_stat()
            A("ds_read_b32 v28, v2")
            vprep()
            A(f"s_branch L_deep{nx}")
        A.label("L_deepz2")
        vmfma(VC)
        lds_inc(31)
        vprep()
        vmfma(VD)
        A("s_branch L_vfin")
        A.label("L_deepz1")
        vmfma(VA)
        lds_inc(31)
        vprep()
        A("s_branch L_vfb")

    A.label("L_flush")
    if o["stamps"] == 4:
        A("s_mov_b64 s[24:25], s[26:27]\ns_mov_b64 s[26:27], s[28:29]\ns_memrealtime s[28:29]")
    flush()
    exec_set(FULL)
    A("s_waitcnt lgkmcnt(0)")
    for i in range(12):
        A(f"v_mov_b32 v{8 + i}, 0")
    A("v_add_u32 v3, 6144, v3\nv_add_u32 v32, 4, v32")
    fetch_stat()
    A("ds_read_b32 v28, v2")
    vprep()
    A("s_branch L_v")

    def preduce(base, off_v, soff, tag_v, fast=""):
        for lvl, (cnt, step) in enumerate([(4, 4), (2, 8), (1, 16)]):
            for i in range(cnt):
                a_ = base + 2 * step * i
                if lvl == 0:
                    A(f"s_waitcnt lgkmcnt({6 - 2 * i})")
                A(f"v_pk_add_f32 v[{a_}:{a_ + 1}], v[{a_}:{a_ + 1}], v[{a_ + step}:{a_ + step + 1}]")
                A(f"v_pk_add_f32 v[{a_ + 2}:{a_ + 3}], v[{a_ + 2}:{a_ + 3}], v[{a_ + step + 2}:{a_ + step + 3}]")
        A(f"v_and_or_b32 v{base + 3}, v{base + 3}, s59, v{tag_v}")
        dual(lambda f: A(f"buffer_store_dwordx4 {vr(base, 4)}, v{off_v}, {WS_SRD}, {soff} offen {f}"), fast)

    A.label("L_vfa")
    vmfma(VA)
    A("s_branch L_vfin")
    A.label("L_v_last")
    A(f"s_add_u32 s83, s82, {PB}")
    for i in range(4):
        cur, nx = (VB, VA) if i % 2 == 0 else (VA, VB)
        if i in (1, 2):
            A(f"s_cmp_eq_u32 s89, {i}")
        A("s_waitcnt vmcnt(0)")
        if i in (1, 2):
            A(f"s_cbranch_scc1 {'L_vfa' if i == 1 else 'L_vfb'}")
        issue(nx, V_SRD, (["s82"] + CL)[i])
        if o["tlb"] & 1 and i == 1:
            A("s_sub_u32 s7, s86, 6144")
            exec_set(1)
            A(f"buffer_load_dword v149, v34, {WS_SRD}, s7 offen sc1")
            exec_set(FULL)
        A(f"ds_read_b32 v28, v2 offset:{32 * i}")
        vmfma(cur)
        lds_inc(31)
        vprep()
    A("s_waitcnt vmcnt(0)")
    A.label("L_vfb")
    vmfma(VB)
    A.label("L_vfin")
    flush()
    exec_set((1 << 48) - 1)
    for i in range(8):
        A(f"ds_read_b128 {vr(160 + 4 * i, 4)}, v34 offset:{L_OL + 3 * 6144 + 768 * i}")
    A("s_waitcnt lgkmcnt(9)")
    A("v_readfirstlane_b32 s87, v28")
    A("s_cmp_lg_u32 s87, 3\ns_cbranch_scc1 L_notlast")
    preduce(160, 34, "s86", 140, o["pnt"])
    exec_set(FULL)
    stamp(1, 28, 30)
    A.label("L_notlast")
    if o["epf"] is not None:
        exec_set(FULL)
        A("s_lshl_b32 s6, s2, 2\ns_add_u32 s6, s6, s3\ns_mul_i32 s7, s6, 7680")
        for i in range(8 if 'o' in o['epfw'] else 0):
            A(f"buffer_load_dwordx4 {vr(192 + 4 * i, 4)}, v34, s[40:43], s7 offen offset:{1024 * (i % 4)} {o['epf']}")
            if i == 3:
                A("s_add_u32 s7, s7, 4096")
        A("v_mul_u32_u24 v28, 43, v0\nv_lshrrev_b32 v28, 10, v28\nv_mul_u32_u24 v28, 2688, v28\nv_add_u32 v28, v28, v34")
        A(f"s_and_b32 s7, s6, 127\ns_mul_i32 s7, s7, {5 * 3072}\ns_lshr_b32 s83, s2, 5\ns_mul_i32 s83, s83, 384\ns_add_u32 s7, s7, s83")
        exec_set((1 << 48) - 1)
        for i in range(3):
            if i == 2:
                exec_set((1 << 24) - 1)
            A(f"buffer_load_dwordx4 {vr(224 + 4 * i, 4)}, v28, s[44:47], s7 offen {o['epf']}")
            A("s_add_u32 s7, s7, 6144")
        exec_set(FULL)
        A("s_mul_i32 s7, s6, 1920")
        for i in range(2):
            A(f"buffer_load_dwordx4 {vr(240 + 4 * i, 4)}, v34, s[48:51], s7 offen offset:{1024 * i} {o['epf']}")
    if o["stamps"]:
        A("s_cmp_lg_u32 s3, 0\ns_cbranch_scc1 L_end")
        A("s_add_u32 s98, s80, 0x40000000\ns_addc_u32 s99, s81, 0\ns_lshl_b32 s95, s2, 6")
        exec_set(1)
        A("v_mov_b32 v30, s95\nv_mov_b32 v28, s20\nv_mov_b32 v29, s21\nv_mov_b32 v26, s22\nv_mov_b32 v27, s23")
        A("global_store_dwordx2 v30, v[28:29], s[98:99]\nglobal_store_dwordx2 v30, v[26:27], s[98:99] offset:24")
        if o["stamps"] in (3, 4, 5):
            if o["stamps"] != 5:
                A("s_memrealtime s[30:31]\ns_waitcnt lgkmcnt(0)")
            for sl, sr in ((4, 24), (5, 26), (6, 28), (7, 30)):
                A(f"v_mov_b32 v28, s{sr}\nv_mov_b32 v29, s{sr + 1}\nglobal_store_dwordx2 v30, v[28:29], s[98:99] offset:{8 * sl}")
    A("s_endpgm")

    A.label("L_helper")
    A("s_sub_u32 s82, s3, 4")
    A("v_lshlrev_b32 v4, 2, v0\nv_mov_b32 v5, 0")
    if o["nohelp"]:
        A("v_cmp_le_u32 vcc, 16, v0\nv_cndmask_b32 v5, 0, 4, vcc")
    A("s_cmp_lg_u32 s82, 0\ns_cbranch_scc1 L_noinit")
    A("ds_write_b32 v4, v5")
    A.label("L_noinit")
    A("v_and_b32 v1, 15, v0\nv_lshrrev_b32 v2, 4, v0")
    tab = sum(v << (4 * i) for i, v in enumerate(ROLES))
    A("s_lshr_b32 s89, s2, 5\ns_lshr_b32 s85, s5, 1\ns_and_b32 s6, s4, 3\ns_lshl_b32 s6, s6, 2\ns_add_u32 s6, s6, s85\ns_lshl_b32 s6, s6, 2")
    A(f"s_mov_b32 s90, {hex(tab & 0xFFFFFFFF)}\ns_mov_b32 s91, {hex(tab >> 32)}\ns_lshr_b64 s[90:91], s[90:91], s6\ns_and_b32 s90, s90, 15")
    A("s_mul_i32 s6, s89, 6\ns_add_u32 s6, s6, s90\ns_sub_u32 s91, s6, 10")
    A("s_cmp_lt_u32 s90, 10\ns_cselect_b32 s88, 1, 2\ns_cmp_lt_u32 s85, 3\ns_cselect_b32 s7, 3, 0")
    if o["noroles"]:
        A("s_mov_b32 s88, 0")
    A("s_xor_b32 s6, s4, s5\ns_bitcmp1_b32 s6, 0\ns_cselect_b32 s88, s7, s88")
    A("v_lshrrev_b32 v5, 2, v1\nv_mul_u32_u24 v5, 1280, v5")
    A("v_and_b32 v6, 3, v1\nv_lshl_add_u32 v6, v2, 2, v6\nv_lshl_add_u32 v6, v6, 4, v5")
    A("v_lshl_add_u32 v7, v2, 4, v5")
    A(f"v_mul_u32_u24 v3, {8 * 12288}, v2\nv_lshl_add_u32 v3, v1, 4, v3")
    A("s_and_b32 s83, s2, 31\ns_mul_i32 s84, s83, 43\ns_lshr_b32 s84, s84, 8\ns_mul_i32 s6, s84, 6\ns_sub_u32 s12, s83, s6")
    A("s_lshl_b32 s6, s84, 2\ns_add_u32 s6, s6, s82\ns_lshl_b32 s86, s6, 6")
    A(f"s_mul_i32 s87, s6, {32 * 12288}\ns_mul_i32 s6, s89, 1536\ns_add_u32 s87, s87, s6\ns_lshl_b32 s6, s12, 8\ns_add_u32 s87, s87, s6")
    A("v_and_b32 v5, 31, v0\nv_lshlrev_b32 v5, 2, v5\ns_lshl_b32 s6, s12, 7\nv_add_u32 v5, s6, v5")
    A("v_mul_u32_u24 v8, 342, v5\nv_lshrrev_b32 v8, 16, v8\nv_lshlrev_b32 v5, 2, v5")
    A(f"v_mul_u32_u24 v8, {15360 - 768}, v8\nv_add_u32 v5, v5, v8")
    A("v_lshrrev_b32 v8, 5, v0\nv_mul_u32_u24 v8, 768, v8\nv_add_u32 v5, v5, v8")
    A(f"s_mul_i32 s6, s89, 20\ns_add_u32 s6, s6, s84\ns_mul_i32 s13, s6, 3072\ns_add_u32 s13, s13, {QP}")
    A(f"s_cmp_lt_u32 s83, 30\ns_cselect_b32 s13, s13, {WSEND}")
    A(f"s_mul_i32 s7, s82, 1536\ns_add_u32 s7, s7, s13\ns_cmp_lt_u32 s82, {2 if o['preq'] else 0}\ns_cselect_b32 s14, s7, {WSEND}")
    A("s_waitcnt lgkmcnt(0)")
    if o["hbar"] == "early" or o["nohelp"]:
        A("s_barrier")
    if o["nohelp"]:
        A("s_endpgm")
    if o["stamps"] == 2:
        A("s_memrealtime s[100:101]")
    srd(20, 56, 5120)
    srd(24, 62, 0 if 'q' in o['skipw'] else 640 * 6144 * 2)
    A(f"s_load_dword s57, s[80:81], {EP}")
    if o["xs"]:
        A("s_mul_i32 s6, s82, 1280\nv_lshlrev_b32 v6, 4, v0")
        A(f"buffer_load_dwordx4 v[64:67], v6, {X_SRD}, s6 offen")
        A(f"buffer_load_dword v68, v4, {X_SRD}, s6 offen offset:1024")
    for i in range(0 if o["xs"] else 5):
        A(f"buffer_load_dwordx4 {vr(64 + 4 * i, 4)}, v6, {X_SRD}, 0 offen offset:{256 * i}")
    A(f"buffer_load_dwordx4 v[84:87], v7, {X_SRD}, s86 offen")
    srd(16, 80, WSEND)
    A(f"buffer_load_dwordx4 v[88:91], v5, {WS_SRD}, s14 offen {o['pfl']}")
    for jj in range(8):
        A(f"buffer_load_dwordx4 {vr(128 + 4 * jj, 4)}, v3, {WQ_SRD}, s87 offen {o['wnt']}")
        if jj < 7:
            A("s_add_u32 s87, s87, 12288")
    if o["hbar"] == "issue" and not o["xs"]:
        A("s_barrier")
    srd(52, 78, 256)
    A("s_getreg_b32 s6, hwreg(HW_REG_XCC_ID, 0, 4)")
    A("s_mul_i32 s7, s6, s6\ns_lshl_b32 s7, s7, 15\ns_lshl_b32 s6, s6, 6\ns_add_u32 s6, s6, s7\ns_add_u32 s15, s6, 1")
    A("v_mov_b32 v33, 1\nv_mov_b32 v32, 0\nv_mov_b32 v34, s15")
    A("s_lshl_b32 s14, s89, 5\ns_cmp_eq_u32 s82, 0\ns_cselect_b32 s7, s14, 256\ns_lshl_b32 s15, s15, 5")
    if o["nocen"]:
        A("s_mov_b32 s7, 256")
    exec_set(1)
    A(f"buffer_atomic_add v34, v32, {DBG_SRD}, s7 offen sc1")
    exec_set(FULL)
    srd(28, 64, 0 if 'o' in o['skipw'] else 6144 * 640 * 2)
    srd(32, 68, 0 if '1' in o['skipw'] else 640 * 1536 * 2)
    srd(36, 72, 0 if '2' in o['skipw'] else 1536 * 640 * 2)
    srd(40, 70, 1536 * 2)
    srd(44, 74, 640 * 2)
    srd(48, 76, 4 * 640 * 2)
    A("s_mov_b32 s60, 0x05040100\ns_mov_b32 s61, 0x07060302\ns_mov_b32 s62, 0x3f803f80\ns_mov_b32 s64, 0")
    A(f"s_lshl_b32 s6, s4, 2\ns_add_u32 s6, s6, s82\ns_lshl_b32 s9, s6, 7\ns_lshl_b32 s6, s6, 3\ns_add_u32 s6, s6, s5")
    A(f"s_mul_i32 s8, s6, 768\ns_add_u32 s8, s8, {PP}")
    A(f"s_add_u32 s9, s9, {ST}\ns_lshl_b32 s6, s5, 4\ns_add_u32 s10, s9, s6")
    A(f"s_mul_i32 s6, s4, 20\ns_add_u32 s6, s6, s82\ns_mul_i32 s11, s6, 768\ns_add_u32 s11, s11, {QP}")
    A("s_add_u32 s12, s11, 6144\ns_add_u32 s92, s11, 12288")
    closing_count(56)
    A("s_lshl_b32 s56, s56, 2\ns_add_u32 s56, s56, 248")
    A("v_lshlrev_b32 v4, 4, v0")
    A("s_waitcnt lgkmcnt(0)")
    launch_tag()
    tagbyte(35, 4)
    tagbyte(9, 5)
    for k in range(4):
        A(f"v_bfe_u32 v{20 + k}, v9, {2 * k}, 2\nv_bfe_u32 v{24 + k}, v35, {2 * k}, 2")
    A(f"s_lshl_b32 s6, s82, 11\ns_add_u32 s6, s6, {L_OL}\nv_lshl_add_u32 v8, v0, 5, s6")

    def ln_scalars(s1, s2, t):
        A(f"v_mul_f32 v{s1}, {f2u(1 / 640)}, v{s1}\nv_mul_f32 v{s2}, {f2u(1 / 640)}, v{s2}")
        A(f"v_fma_f32 v{s2}, -v{s1}, v{s1}, v{s2}\nv_max_f32 v{s2}, 0, v{s2}")
        A(f"v_cvt_pk_bf16_f32 v{t}, v{s1}, v{s2}")
        unpack(s1, s2, t)
        A(f"v_add_f32 v{s2}, {f2u(1e-5)}, v{s2}")
        rne(s2)
        A(f"v_sqrt_f32 v{s2}, v{s2}")
        rne(s2)
        A(f"v_rcp_f32 v{s2}, v{s2}")

    A("s_waitcnt vmcnt(11)")
    if o["stamps"] == 2:
        A("s_memrealtime s[70:71]")
    for i in range(5 if o["xs"] else 20):
        A(f"v_dot2_f32_bf16 v12, v{64 + i}, s62, {'0' if i == 0 else 'v12'}")
        A(f"v_dot2_f32_bf16 v13, v{64 + i}, v{64 + i}, {'0' if i == 0 else 'v13'}")
    for m in ("quad_perm:[1,0,3,2]", "quad_perm:[2,3,0,1]") + (("row_ror:4", "row_ror:8") if o["xs"] else ()):
        A(f"v_add_f32_dpp v12, v12, v12 {m} {DPPM}\nv_add_f32_dpp v13, v13, v13 {m} {DPPM}")
    for sw in ("v_permlane16_swap_b32", "v_permlane32_swap_b32"):
        A(f"v_mov_b32 v14, v12\nv_mov_b32 v15, v13\n{sw} v12, v14\n{sw} v13, v15\nv_add_f32 v12, v12, v14\nv_add_f32 v13, v13, v15")
    ln_scalars(12, 13, 14)
    if o["xs"]:
        A("s_lshl_b32 s6, s82, 3\nv_mov_b32 v14, s6\nv_lshrrev_b32 v15, 2, v1\nv_lshlrev_b32 v15, 3, v15")
        exec_set(1)
        A(f"ds_write_b64 v14, v[12:13] offset:{L_XS}")
        exec_set(FULL)
        A("s_waitcnt lgkmcnt(0)")
        A("s_barrier")
        A(f"ds_read_b64 v[12:13], v15 offset:{L_XS}")
        A("s_waitcnt lgkmcnt(0)")
    A("s_waitcnt vmcnt(10)")
    for i in range(0, 4, 2):
        a, b = 84 + i, 85 + i
        unpack(14, 15, a)
        unpack(16, 17, b)
        for r in range(14, 18):
            A(f"v_sub_f32 v{r}, v{r}, v12")
        A(f"v_cvt_pk_bf16_f32 v{a}, v14, v15\nv_cvt_pk_bf16_f32 v{b}, v16, v17")
        unpack(14, 15, a)
        unpack(16, 17, b)
        for r in range(14, 18):
            A(f"v_mul_f32 v{r}, v{r}, v13")
        A(f"v_cvt_pk_bf16_f32 v{a}, v14, v15\nv_cvt_pk_bf16_f32 v{b}, v16, v17")

    def frags(dst, raw):
        for r in range(4):
            A(f"v_perm_b32 v{dst + r}, v{raw + 2 * r + 1}, v{raw + 2 * r}, s60")
            A(f"v_perm_b32 v{dst + 4 + r}, v{raw + 2 * r + 1}, v{raw + 2 * r}, s61")

    def frags2(dst, raw):
        for d in range(2):
            for r in range(4):
                a = raw + 4 * r + d
                A(f"v_perm_b32 v{dst + 8 * d + r}, v{a + 2}, v{a}, s60")
                A(f"v_perm_b32 v{dst + 8 * d + 4 + r}, v{a + 2}, v{a}, s61")

    for r in range(4):
        A(f"s_waitcnt vmcnt({7 - 2 * r})")
        for d in range(4):
            for e in range(2):
                A(f"v_perm_b32 v{160 + 4 * (2 * d + e) + r}, v{128 + 8 * r + 4 + d}, v{128 + 8 * r + d}, s{60 + e}")
                if r == 3:
                    c = 2 * d + e
                    if c > 0:
                        A(f"v_mfma_f32_16x16x32_bf16 {vr(96 + 4 * (c - 1), 4)}, v[84:87], {vr(160 + 4 * (c - 1), 4)}, 0")
    A("v_mfma_f32_16x16x32_bf16 v[124:127], v[84:87], v[188:191], 0")
    if o["stamps"] == 2:
        A("s_memrealtime s[72:73]")
    for c in (1, 2, 3):
        A(f"v_mov_b32 v{96 + c}, v{96 + 4 * c}")
    A("ds_write_b128 v8, v[96:99]")
    for c in (1, 2, 3):
        A(f"v_mov_b32 v{112 + c}, v{112 + 4 * c}")
    A("ds_write_b128 v8, v[112:115] offset:16")
    exec_set(1)
    A(f"ds_add_rtn_u32 v12, v32, v33 offset:{L_QJOIN}")
    exec_set(FULL)
    for hf in range(2):
        for w in range(4):
            A(f"ds_read_b128 {vr(128 + 16 * hf + 4 * w, 4)}, v4 offset:{L_OL + 2048 * w + 1024 * hf}")
    A("s_waitcnt lgkmcnt(8)")
    A("v_readfirstlane_b32 s63, v12")
    if o["noqp"]:
        exec_set(1)
        A(f"ds_add_u32 v32, v33 offset:{L_QRDY}\nds_write_b32 v32, v33 offset:{L_MODE}")
        exec_set(FULL)
        A("s_branch L_qdone")
    A("s_cmp_lg_u32 s63, 3\ns_cbranch_scc1 L_qpub")

    def qstores(f):
        for hf in range(2):
            A(f"buffer_store_dwordx4 {vr(128 + 16 * hf, 4)}, v5, {WS_SRD}, s13 offen offset:{1536 * hf} {f}")

    for hf in range(2):
        a = 128 + 16 * hf
        A(f"s_waitcnt lgkmcnt({6 - 4 * hf})")
        A(f"v_pk_add_f32 v[{a}:{a + 1}], v[{a}:{a + 1}], v[{a + 4}:{a + 5}]\nv_pk_add_f32 v[{a + 2}:{a + 3}], v[{a + 2}:{a + 3}], v[{a + 6}:{a + 7}]")
        A(f"s_waitcnt lgkmcnt({4 - 4 * hf})")
        A(f"v_pk_add_f32 v[{a + 8}:{a + 9}], v[{a + 8}:{a + 9}], v[{a + 12}:{a + 13}]\nv_pk_add_f32 v[{a + 10}:{a + 11}], v[{a + 10}:{a + 11}], v[{a + 14}:{a + 15}]")
        A(f"v_pk_add_f32 v[{a}:{a + 1}], v[{a}:{a + 1}], v[{a + 8}:{a + 9}]\nv_pk_add_f32 v[{a + 2}:{a + 3}], v[{a + 2}:{a + 3}], v[{a + 10}:{a + 11}]")
        for k in range(4):
            A(f"v_and_or_b32 v{a + k}, v{a + k}, -4, v{20 + k}")
        A(f"buffer_store_dwordx4 {vr(a, 4)}, v5, {WS_SRD}, s13 offen offset:{1536 * hf} {o['qnt']}")
    A.label("L_qpub")
    if o["stamps"] == 2:
        A("s_memrealtime s[74:75]")

    MS = [68, 69, 77, 83, 84, 85, 86, 87]

    def gather(stem, n, base, loads, mask, tag_v, check, on_fail, spread=False, tight=False):
        top, ok = A.fresh(stem + "_poll"), A.fresh(stem + "_ok")
        A(f"s_mov_b32 s67, {(1 << n) - 1}\ns_mov_b32 s94, 0x8000")
        if mask != FULL:
            exec_set(mask)
        A.label(top)
        for i in range(n):
            sk = A.fresh(stem + "_sk")
            A(f"s_bitcmp1_b32 s67, {i}\ns_cselect_b32 s{MS[i]}, -1, 0\ns_cbranch_scc0 {sk}")
            A(loads(i))
            A.label(sk)
        A("s_waitcnt vmcnt(0)")
        if spread:
            t = [check + 1 + i for i in range(n)]
            for i in range(n):
                r = base + 4 * i
                for k in range(4):
                    A(f"v_bitop3_b32 v{r + k}, v{r + k}, v{tag_v + k}, s{MS[i]} bitop3:0x78")
                A(f"v_or3_b32 v{t[i]}, v{r}, v{r + 1}, v{r + 2}\nv_bitop3_b32 v{t[i]}, v{t[i]}, v{r + 3}, 3 bitop3:0xa8")
        else:
            t = [base + 4 * i + 3 for i in range(n)]
            for i in range(n):
                A(f"v_bitop3_b32 v{t[i]}, v{t[i]}, v{tag_v}, s{MS[i]} bitop3:0x78")
        A(f"v_or3_b32 v{check}, v{t[0]}, v{t[1]}, v{t[2]}")
        k = 3
        while k + 1 < n:
            A(f"v_or3_b32 v{check}, v{check}, v{t[k]}, v{t[k + 1]}")
            k += 2
        if k < n:
            A(f"v_or_b32 v{check}, v{check}, v{t[k]}")
        A(f"v_cmp_ne_u32_sdwa vcc, v{check}, v32 src0_sel:BYTE_0 src1_sel:DWORD")
        A(f"s_cbranch_vccz {ok}")
        A("s_mov_b32 s67, 0")
        for i in range(n):
            A(f"v_cmp_ne_u32_sdwa vcc, v{t[i]}, v32 src0_sel:BYTE_0 src1_sel:DWORD")
            A(f"s_cmp_lg_u64 vcc, 0\ns_cselect_b32 s6, {1 << i}, 0\ns_or_b32 s67, s67, s6")
        if tight:
            tl = [A.fresh(stem + "_t") for _ in range(n)]
            for i in range(n - 1):
                A(f"s_bitcmp1_b32 s67, {i}\ns_cbranch_scc1 {tl[i]}")
            keep = A.lines
            for i in range(n):
                if i < n - 1:
                    A.lines = []
                else:
                    A.lines = keep
                A.label(tl[i])
                A(loads(i))
                A(f"s_sub_u32 s94, s94, 1\ns_cbranch_scc1 {ok}\ns_cmp_eq_u32 s67, {1 << i}")
                A("s_waitcnt vmcnt(0)")
                A(f"v_xor_b32 v{t[i]}, v{t[i]}, v{tag_v}")
                A(f"v_cmp_ne_u32_sdwa vcc, v{t[i]}, v32 src0_sel:BYTE_0 src1_sel:DWORD")
                A(f"s_cbranch_vccnz {tl[i]}")
                if i < n - 1:
                    A(f"s_cbranch_scc1 {ok}")
                    A(f"s_bitset0_b32 s67, {i}\ns_branch {top}")
                    near.extend(A.lines)
            A.label(ok)
            return
        on_fail()
        A(f"s_sub_u32 s94, s94, 1\ns_cmp_lg_u32 s94, 0\ns_cbranch_scc1 {top}")
        A.label(ok)

    def gather_fast(stem, base, loads, mask, tag_v, check, fb=None):
        top, ok = A.fresh(stem + "_poll"), A.fresh(stem + "_ok")
        mk_ = [68, 84, 86, 96, 98, 6, 66, 10]
        t = [base + 4 * i + 3 for i in range(8)]
        exec_set(mask)
        for i in range(8):
            A(f"s_mov_b64 s[{mk_[i]}:{mk_[i] + 1}], exec\nv_not_b32 v{t[i]}, v{tag_v}")
        A("s_mov_b32 s94, 0x8000")
        A.label(top)
        for i in range(8):
            A(f"s_mov_b64 exec, s[{mk_[i]}:{mk_[i] + 1}]")
            A(loads(i))
        exec_set(mask)
        for i in range(8):
            A(f"v_cmp_ne_u32_sdwa s[{mk_[i]}:{mk_[i] + 1}], v{t[i]}, v{tag_v} src0_sel:BYTE_0 src1_sel:DWORD")
        for i in range(8):
            A(f"s_cmp_lg_u64 s[{mk_[i]}:{mk_[i] + 1}], 0\ns_cselect_b64 s[{mk_[i]}:{mk_[i] + 1}], exec, 0")
        if fb:
            A("s_mov_b32 s93, 0")
            for i in range(8):
                A(f"s_cmp_lg_u64 s[{mk_[i]}:{mk_[i] + 1}], 0\ns_addc_u32 s93, s93, 0")
        A(f"s_sub_u32 s94, s94, 1")
        if fb:
            A(f"s_cbranch_scc1 {ok}\ns_cmp_ge_u32 s93, {fb[0]}")
        A("s_waitcnt vmcnt(0)")
        A(f"v_xor_b32 v{check}, v{t[0]}, v{tag_v}\nv_xor_b32 v{check + 1}, v{t[1]}, v{tag_v}")
        for i in range(2, 8):
            A(f"v_bitop3_b32 v{check + (i & 1)}, v{check + (i & 1)}, v{t[i]}, v{tag_v} bitop3:0xf6")
        A(f"v_or_b32 v{check}, v{check}, v{check + 1}")
        A(f"v_cmp_ne_u32_sdwa vcc, v{check}, v32 src0_sel:BYTE_0 src1_sel:DWORD")
        if fb:
            A(f"s_cbranch_vccz {ok}")
            A(f"s_cbranch_scc0 {top}")
            A(f"s_cmp_eq_u32 s94, 0x7fff\ns_cbranch_scc1 {top}")
            A(f"s_sleep {fb[1]}\ns_branch {top}")
        else:
            A(f"s_cbranch_scc1 {ok}")
            A(f"s_cbranch_vccnz {top}")
        A.label(ok)
        for i in range(8):
            A(f"v_and_b32 v{t[i]}, s59, v{t[i]}")

    def census(undecided, mask):
        pure = A.fresh("pure")
        if o["nocen"]:
            A("s_mov_b32 s6, s15")
            decide(pure, mask)
            return
        A(f"buffer_load_dword v12, v32, {DBG_SRD}, s14 offen sc1")
        A("s_waitcnt vmcnt(0)")
        A("v_readfirstlane_b32 s6, v12")
        A(f"s_and_b32 s7, s6, 63\ns_cmp_lg_u32 s7, 32\ns_cbranch_scc1 {undecided}")
        decide(pure, mask)

    def decide(pure, mask):
        if not o["slow"]:
            A(f"s_cmp_eq_u32 s6, s15\ns_cbranch_scc1 {pure}")
        A("s_mov_b32 s64, 1")
        exec_set(FULL)
        qstores("sc1")
        exec_set(mask)
        A.label(pure)
        A("s_add_u32 s6, s64, 1\nv_mov_b32 v12, s6\ns_mov_b32 s63, 4")
        A(f"ds_write_b32 v32, v12 offset:{L_MODE}")

    M48 = (1 << 48) - 1

    def qfail():
        cont = A.fresh("qf_cont")
        A(f"s_sleep {o['qsleep']}")
        A(f"s_cmp_lg_u32 s63, 3\ns_cbranch_scc1 {cont}")
        A(f"s_and_b32 s6, s94, 7\ns_cmp_lg_u32 s6, 1\ns_cbranch_scc1 {cont}")
        census(cont, M48)
        A.label(cont)

    A(f"s_mul_i32 s6, s82, 384\ns_add_u32 s6, s6, {L_Q}\nv_lshl_add_u32 v10, v0, 3, s6")
    if o["qs0"]:
        A(f"s_sleep {o['qs0']}")
    gather("qg", 5, 64,
           lambda i: f"buffer_load_dwordx4 {vr(64 + 4 * i, 4)}, v4, {WS_SRD}, {['s11', 's12', 's92'][i // 2]} offen offset:{3072 * (i % 2)} {o['qld']}",
           M48, 24, 13, qfail, spread=True)
    for a, b in ((64, 68), (72, 76), (64, 72), (64, 80)):
        A(f"v_pk_add_f32 v[{a}:{a + 1}], v[{a}:{a + 1}], v[{b}:{b + 1}]\nv_pk_add_f32 v[{a + 2}:{a + 3}], v[{a + 2}:{a + 3}], v[{b + 2}:{b + 3}]")
    A("v_cvt_pk_bf16_f32 v12, v64, v65\nv_cvt_pk_bf16_f32 v13, v66, v67")
    A("ds_write_b64 v10, v[12:13]")
    exec_set(1)
    A(f"ds_add_u32 v32, v33 offset:{L_QRDY}")
    exec_set(FULL)
    if o["stamps"]:
        A("s_cmp_lg_u32 s82, 0\ns_cbranch_scc1 L_nostamp2")
        stamp(2, 12, 14)
        if o["stamps"] == 2:
            exec_set(1)
            for k, sr in enumerate((100, 70, 72, 74)):
                A(f"v_mov_b32 v12, s{sr}\nv_mov_b32 v13, s{sr + 1}")
                A(f"global_store_dwordx2 v14, v[12:13], s[98:99] offset:{16 + 8 * k}")
            exec_set(FULL)
        A.label("L_nostamp2")
    A("s_cmp_lg_u32 s63, 3\ns_cbranch_scc1 L_qdone")
    A("s_mov_b32 s94, 0x800")
    A.label("L_cen")
    census("L_cen_again", FULL)
    A("s_branch L_qdone")
    A.label("L_cen_again")
    A("s_sleep 32")
    A("s_sub_u32 s94, s94, 1\ns_cmp_lg_u32 s94, 0\ns_cbranch_scc1 L_cen")
    A("s_mov_b32 s6, 0")
    decide(A.fresh("pure"), FULL)
    A.label("L_qdone")
    A("s_waitcnt vmcnt(0) lgkmcnt(0)")

    if o["l2pf"] is not None:
        A("s_sub_u32 s6, s88, 1\ns_cmp_lt_u32 s6, 2\ns_cbranch_scc1 L_wrole")
        if o["skipw"]:
            A(f"s_mov_b32 s30, {6144 * 640 * 2}\ns_mov_b32 s34, {640 * 1536 * 2}")
        A("s_and_b32 s6, s4, 3\ns_lshl_b32 s6, s6, 2\ns_add_u32 s6, s6, s85\ns_lshl_b32 s6, s6, 2\ns_add_u32 s12, s6, s82")
        A(f"s_lshl_b32 s7, s89, 6\ns_add_u32 s7, s7, s12\ns_mul_i32 s7, s7, 15360")
        n = 0
        for i in range(15):
            A(f"buffer_load_dwordx4 {vr(160 + 4 * i, 4)}, v4, {WO_SRD}, s7 offen offset:{1024 * (i % 4)} {o['l2pf']}")
            if i % 4 == 3:
                A("s_add_u32 s7, s7, 4096")
            n += 1
            if n % o["pfth"] == 0:
                A("s_waitcnt vmcnt(0)")
        A("v_mul_u32_u24 v12, 43, v0\nv_lshrrev_b32 v12, 10, v12\nv_mul_u32_u24 v12, 2688, v12\nv_add_u32 v12, v12, v4")
        A(f"s_mul_i32 s7, s12, {10 * 3072}\ns_mul_i32 s6, s89, 384\ns_add_u32 s7, s7, s6")
        exec_set((1 << 48) - 1)
        for i in range(5):
            A(f"buffer_load_dwordx4 {vr(224 + 4 * i, 4)}, v12, {W1_SRD}, s7 offen {o['l2pf']}")
            if i < 4:
                A("s_add_u32 s7, s7, 6144")
        exec_set(FULL)
        A("s_waitcnt vmcnt(0)")
        A("s_branch L_stats")
        A.label("L_wrole")
    if o["wgate"]:
        lds_wait(32, L_KCNT, 12, "s_cmp_ge_u32", o["wgate"], 16, "wg")
    if o["wlate"]:
        A("s_branch L_stats")
        A.label("L_wl")
        if o["touch"]:
            A(f"s_mov_b32 s66, {256 - o['touch']}")
            lds_wait(32, L_PROG, 12, "s_cmp_ge_u32", "s66", 16, "tw")
            A(f"s_lshl_b32 s6, s89, 2\ns_add_u32 s6, s6, s82\ns_mul_i32 s7, s6, {192 * 1280}\nv_lshlrev_b32 v12, 12, v0\nv_lshlrev_b32 v13, 15, v0")
            A(f"buffer_load_dword v14, v12, {WO_SRD}, s7 offen nt\nbuffer_load_dword v15, v13, {W1_SRD}, 0 offen nt\nbuffer_load_dword v16, v13, {W2_SRD}, 0 offen nt")
            A("s_waitcnt vmcnt(0)")
        A(f"s_cmp_eq_u32 s88, 2\ns_cselect_b32 s66, {256 - o['wlate'][1]}, s56\ns_cmp_eq_u32 s88, 1\ns_cselect_b32 s66, {256 - o['wlate'][0]}, s66")
        lds_wait(32, L_PROG, 12, "s_cmp_ge_u32", "s66", 4, "wl")
    if o["clate"] is None:
        A("s_cmp_eq_u32 s88, 2\ns_cbranch_scc1 L_wc")
    A("s_cmp_lg_u32 s88, 1\ns_cbranch_scc1 L_stats")
    A("v_mul_u32_u24 v3, 2560, v2\nv_lshl_add_u32 v3, v1, 3, v3")
    A(f"s_lshl_b32 s6, s89, 2\ns_add_u32 s92, s6, s82\ns_mul_i32 s7, s92, {192 * 1280}\ns_lshl_b32 s6, s90, 7\ns_add_u32 s7, s7, s6")
    if o["wexp"] == 1:
        A("v_mul_u32_u24 v3, 1280, v2\nv_lshl_add_u32 v3, v1, 4, v3")
        A(f"s_lshr_b32 s6, s90, 1\ns_lshl_b32 s6, s6, 8\ns_mul_i32 s7, s92, {192 * 1280}\ns_add_u32 s7, s7, s6\ns_and_b32 s6, s90, 1\ns_mul_i32 s6, s6, {96 * 1280}\ns_add_u32 s7, s7, s6")
        for i in range(24):
            A(f"buffer_load_dwordx4 {vr(160 + 4 * i, 4)}, v3, {WO_SRD}, s7 offen {o['wnt'] if o['rwf'] is None else o['rwf']}")
            A(f"s_add_u32 s7, s7, {4 * 1280}")
    if o["wexp"] == 2:
        A(f"s_mul_i32 s7, s92, {192 * 1280}\ns_mul_i32 s6, s90, 24576\ns_add_u32 s7, s7, s6")
        for i in range(24):
            A(f"buffer_load_dwordx4 {vr(160 + 4 * i, 4)}, v4, {WO_SRD}, s7 offen {o['wnt'] if o['rwf'] is None else o['rwf']}")
            A(f"s_add_u32 s7, s7, 1024")
    if o["wexp"] == 3:
        A(f"s_mul_i32 s7, s92, {192 * 1280}\ns_mul_i32 s6, s90, 24576\ns_add_u32 s7, s7, s6")
        for i in range(12):
            A(f"buffer_load_dwordx4 {vr(160 + 4 * i, 4)}, v4, {WO_SRD}, s7 offen {o['wnt'] if o['rwf'] is None else o['rwf']}")
            A(f"s_add_u32 s7, s7, 1024")
    for t in range(6 if not o["wexp"] else 0):
        for q in range(4):
            for hi in range(2):
                A(f"buffer_load_dwordx2 {vr(160 + 16 * t + 2 * (4 * hi + q), 2)}, v3, {WO_SRD}, s7 offen offset:{1280 * hi} {o['wnt'] if o['rwf'] is None else o['rwf']}")
            if (t, q) != (5, 3):
                A(f"s_add_u32 s7, s7, {8 * 1280}")
            if o["wb"] and (8 * t + 2 * q + 2) % o["wb"] == 0:
                A("s_waitcnt vmcnt(0)")
    for t in range(6):
        A(f"s_waitcnt vmcnt({8 * (5 - t)})")
        frags2(64 + 16 * t, 160 + 16 * t)
    if o["wlate"]:
        A("s_cmp_lg_u32 s82, 0\ns_cbranch_scc1 L_end")
        stamp(4, 12, 14)
        A("s_endpgm")
    A("s_branch L_stats")
    if o["clate"] is None:
        cfl = o['rwfc'] if o['rwfc'] is not None else o['rwf'] if o['rwf'] is not None else o['wnt']
        A.label("L_wc")
        A(f"v_mul_u32_u24 v3, {8 * 3072}, v2\nv_lshl_add_u32 v3, v1, 2, v3")
        A(f"s_mul_i32 s7, s82, {160 * 3072}\ns_lshl_b32 s6, s91, 6\ns_add_u32 s7, s7, s6")
        for t in range(5):
            for q in range(4):
                for lo in range(2):
                    A(f"buffer_load_dword v{160 + 8 * t + 2 * q + lo}, v3, {W1_SRD}, s7 offen offset:{3072 * lo} {cfl}")
                if (t, q) != (4, 3):
                    A(f"s_add_u32 s7, s7, {2 * 3072 if q < 3 else 26 * 3072}")
                if o["wc"] and (8 * t + 2 * q + 2) % o["wc"] == 0:
                    A("s_waitcnt vmcnt(0)")
        A("v_and_b32 v40, 7, v0\nv_lshl_add_u32 v40, v2, 3, v40\nv_lshlrev_b32 v12, 1, v40\ns_lshl_b32 s6, s91, 6")
        A(f"buffer_load_ushort v41, v12, {B1_SRD}, s6 offen")
        for t in range(5 if not o["conce"] else 0):
            A(f"s_waitcnt vmcnt({8 * (4 - t) + 1})")
            frags(64 + 8 * t, 160 + 8 * t)
        if o["conce"]:
            A("s_waitcnt vmcnt(39)")
        A(f"v_mul_u32_u24 v3, {8 * 1280}, v2\nv_lshl_add_u32 v3, v1, 3, v3")
        A("s_mul_i32 s12, s82, 3\ns_min_u32 s12, s12, 8")
        A(f"s_mul_i32 s7, s91, {32 * 1280}\ns_lshl_b32 s6, s12, 7\ns_add_u32 s7, s7, s6")
        A("s_cmp_lt_u32 s82, 2\ns_cselect_b32 s6, s7, 0x1000000")
        for jj in range(8):
            for i in range(3):
                A(f"buffer_load_dwordx2 {vr(200 + 16 * i + 2 * jj, 2)}, v3, {W2_SRD}, {'s7' if i < 2 else 's6'} offen offset:{128 * i} {cfl}")
            if jj < 7:
                A("s_add_u32 s7, s7, 1280\ns_add_u32 s6, s6, 1280")
            if o["wc"]:
                A("s_waitcnt vmcnt(0)")
        for t in range(5 if o["conce"] else 0):
            A(f"s_waitcnt vmcnt({8 * (4 - t) + 25})")
            frags(64 + 8 * t, 160 + 8 * t)
        for i in range(4):
            A(f"v_mov_b32 v{24 + i}, s62")
        for t in range(5):
            for f in range(2):
                A(f"v_mfma_f32_16x16x32_bf16 {vr(12 + 4 * f, 4)}, v[24:27], {vr(64 + 8 * t + 4 * f, 4)}, {'0' if t == 0 else vr(12 + 4 * f, 4)}")
        A(f"s_lshl_b32 s6, s82, 7\ns_add_u32 s6, s6, {L_CS}\nv_lshlrev_b32 v20, 3, v1\nv_add_u32 v20, s6, v20")
        A("v_mov_b32 v13, v16")
        exec_set(0xFFFF)
        A("ds_write_b64 v20, v[12:13]")
        exec_set(1)
        A(f"ds_add_u32 v32, v33 offset:{L_CSJOIN}")
        exec_set(FULL)
        lds_wait(32, L_CSJOIN, 12, "s_cmp_eq_u32", 4, 1, "cs")
        A("v_lshlrev_b32 v20, 2, v40")
        for jp in range(4):
            A(f"ds_read_b32 v{12 + jp}, v20 offset:{L_CS + 128 * jp}")
        A("s_waitcnt lgkmcnt(0)")
        A("v_add_f32 v12, v12, v13\nv_add_f32 v14, v14, v15\nv_add_f32 v42, v12, v14")
        A("s_waitcnt vmcnt(0)")
        A("v_lshlrev_b32 v41, 16, v41")
        for i in range(3):
            frags2(104 + 16 * i, 200 + 16 * i)
        if o["wlate"]:
            A("s_cmp_lg_u32 s82, 0\ns_cbranch_scc1 L_end")
            stamp(5, 12, 14)
            A("s_endpgm")

    A.label("L_stats")
    lds_wait(32, L_MODE, 12, "s_cmp_lg_u32", 0, 8, "mode")
    A("s_cmp_lg_u32 s93, 1\ns_cselect_b32 s64, 1, 0")
    A("s_lshl_b32 s6, s82, 2\nv_mov_b32 v12, s6")
    lds_wait(12, L_KCNT, 13, "s_cmp_eq_u32", 4, 8, "kc")
    A(f"s_lshl_b32 s6, s82, 9\ns_add_u32 s6, s6, {L_SC}\nv_lshlrev_b32 v12, 3, v0\nv_add_u32 v12, s6, v12")
    for w in range(4):
        A(f"ds_read_b64 v[{160 + 2 * w}:{161 + 2 * w}], v12 offset:{SCS * w}")
    A(f"v_mul_u32_u24 v12, {SCS}, v2\nv_lshl_add_u32 v12, v1, 2, v12")
    A(f"ds_read_b32 v14, v12 offset:{L_SC + 2048}")
    A("s_cmp_eq_u32 s82, 3\ns_cselect_b64 vcc, -1, 0\nv_mov_b32 v15, 0xff80ff80")
    A("s_waitcnt lgkmcnt(0)")
    A("v_cndmask_b32 v14, v15, v14, vcc")
    for i in range(8):
        unpack(168 + 2 * i, 169 + 2 * i, 160 + i)
    unpack(184, 185, 14)
    A("v_max3_f32 v12, v168, v169, v170")
    for i in range(171, 185, 2):
        A(f"v_max3_f32 v12, v12, v{i}, v{i + 1}")
    A("v_max_f32 v12, v12, v185")

    def wave_reduce(op, v, t):
        for r in (8, 4, 2, 1):
            A(f"{op}_dpp v{v}, v{v}, v{v} row_ror:{r} {DPPM}")
        for sw in ("v_permlane16_swap_b32", "v_permlane32_swap_b32"):
            A(f"v_mov_b32 v{t}, v{v}\n{sw} v{v}, v{t}\n{op} v{v}, v{v}, v{t}")

    wave_reduce("v_max_f32", 12, 14)
    for i in range(18):
        A(f"v_sub_f32 v{168 + i}, v{168 + i}, v12")
    for i in range(18):
        A(f"v_mul_f32 v{168 + i}, {f2u(LOG2E)}, v{168 + i}")
    for i in range(18):
        A(f"v_exp_f32 v{168 + i}, v{168 + i}")
    A("v_add_f32 v168, v168, v184\nv_add_f32 v169, v169, v185")
    for step in (8, 4, 2, 1):
        for i in range(step):
            A(f"v_add_f32 v{168 + i}, v{168 + i}, v{168 + step + i}")
    A("v_mov_b32 v13, v168")
    wave_reduce("v_add_f32", 13, 14)
    A("v_mov_b32 v14, s58\nv_mov_b32 v15, s58")
    exec_set(1)
    dual(lambda f: A(f"buffer_store_dwordx4 v[12:15], v32, {WS_SRD}, s10 offen {f}"), "")
    exec_set(FULL)
    A("v_and_b32 v18, 7, v0\nv_lshlrev_b32 v18, 4, v18\ns_mov_b32 s94, 0x8000")
    A.label("L_stpoll")
    A("s_sleep 32")
    dual(lambda f: A(f"buffer_load_dwordx4 v[12:15], v18, {WS_SRD}, s9 offen {f}"), "sc1")
    A("s_waitcnt vmcnt(0)")
    A("v_cmp_ne_u32 vcc, s58, v15")
    A("s_cbranch_vccz L_stok")
    A("s_sub_u32 s94, s94, 1\ns_cmp_lg_u32 s94, 0\ns_cbranch_scc1 L_stpoll")
    A.label("L_stok")
    A("v_mov_b32 v16, v12")
    for m in ("quad_perm:[1,0,3,2]", "quad_perm:[2,3,0,1]", "row_half_mirror"):
        A(f"v_max_f32_dpp v16, v16, v16 {m} {DPPM}")
    A(f"v_sub_f32 v12, v12, v16\nv_mul_f32 v12, {f2u(LOG2E)}, v12\nv_exp_f32 v12, v12\nv_mul_f32 v17, v12, v13")
    for m in ("quad_perm:[1,0,3,2]", "quad_perm:[2,3,0,1]", "row_half_mirror"):
        A(f"v_add_f32_dpp v17, v17, v17 {m} {DPPM}")
    A("s_add_u32 s6, s64, 1")
    A("v_rcp_f32 v17, v17\nv_mov_b32 v18, s6\nv_mov_b32 v19, 0")
    A("s_lshl_b32 s6, s82, 4\nv_mov_b32 v12, s6")
    exec_set(1)
    A(f"ds_write_b128 v12, v[16:19] offset:{L_STAT}")
    exec_set(FULL)
    if o["wlate"]:
        A("s_sub_u32 s6, s88, 1\ns_cmp_lt_u32 s6, 2\ns_cbranch_scc1 L_wl")
    if o["wonly"]:
        A("s_branch L_end")

    def marker():
        A("s_lshl_b32 s6, s65, 2\nv_mov_b32 v13, s6")
        lds_wait(13, L_VCNT, 12, "s_cmp_eq_u32", 4, o["gsleep"], "vc")
        if o["rank"]:
            A(f"s_cmp_eq_u32 s65, {o['rank'][0]}\ns_cselect_b32 s6, 4, 256\nv_mov_b32 v14, 1")
            exec_set(1)
            A(f"buffer_atomic_add v14, v32, {DBG_SRD}, s6 offen sc0 sc1")
            exec_set(FULL)
        A("s_mul_i32 s6, s65, 6144\ns_add_u32 s7, s8, s6\nv_add_u32 v13, s6, v4")
        exec_set(M48)
        if o["prem"]:
            A(f"buffer_load_dwordx4 v[160:163], v4, {WS_SRD}, s7 offen {o['pfl']}")
            A("s_waitcnt vmcnt(0)")
        for i in range(8):
            A(f"ds_read_b128 {vr(160 + 4 * i, 4)}, v13 offset:{L_OL + 768 * i}")
        preduce(160, 4, "s7", 35)
        A(f"s_lshl_b32 s6, s65, 10\ns_lshl_b32 s7, s2, 2\ns_add_u32 s6, s6, s7\ns_add_u32 s6, s6, {PA}")
        A("v_mov_b32 v12, s58")
        exec_set(1)
        A("s_waitcnt vmcnt(0)")
        dual(lambda f: A(f"buffer_store_dword v12, v32, {WS_SRD}, s6 offen {f}"), "")
        if o["rank"]:
            _, r0, mul, k0, kmax = o["rank"]
            A("v_readfirstlane_b32 s6, v14")
            A(f"s_sub_u32 s7, s6, {r0}\ns_mul_i32 s7, s7, {mul}\ns_lshr_b32 s7, s7, 8\ns_add_u32 s7, s7, {k0}\ns_min_u32 s7, s7, {kmax}")
            A(f"s_cmp_ge_u32 s6, {r0}\ns_cselect_b32 s7, s7, 0\ns_cmp_eq_u32 s65, {o['rank'][0]}\ns_cselect_b32 s6, 0, 4")
            A("v_mov_b32 v14, s7\nv_mov_b32 v13, s6")
            A(f"ds_write_b32 v13, v14 offset:{L_DEEP}")
        exec_set(FULL)

    def gate(g):
        A(f"s_lshl_b32 s66, s65, 6\ns_add_u32 s66, s66, {64 + g}")
        lds_wait(32, L_PROG, 12, "s_cmp_ge_u32", "s66", o["gsleep"], "gate")

    def early(stem, g, mask, load, cont):
        oth, top = A.fresh(stem + "_oth"), A.fresh(stem + "_top")
        A(f"s_cmp_lg_u32 s82, 0\ns_cbranch_scc1 {oth}")
        marker()
        A.label(oth)
        gate(g)
        A("s_mov_b32 s94, 0x8000")
        exec_set(mask)
        A.label(top)
        A(load)
        A("s_waitcnt vmcnt(0)")
        A("v_cmp_ne_u32 vcc, s58, v27")
        A(f"s_cbranch_vccz {cont}")
        A(f"s_sleep {o['psleep']}")
        A(f"s_sub_u32 s94, s94, 1\ns_cmp_lg_u32 s94, 0\ns_cbranch_scc1 {top}")
        A(f"s_branch {cont}")

    def closing(g3):
        A(f"s_sub_u32 s66, s56, {g3}")
        lds_wait(32, L_PROG, 12, "s_cmp_ge_u32", "s66", 2, "g3")

    def lagwatch(post):
        if not o["hl"]:
            return
        m, thr, start, stop = o["hl"]
        top, out, skip = A.fresh("lw"), A.fresh("lw_out"), A.fresh("lw_np")
        if not post:
            A(f"s_cmp_lg_u32 s82, 3\ns_cbranch_scc1 {out}")
        else:
            A(f"s_lshl_b32 s6, s4, 2\ns_add_u32 s6, s6, {RK}\ns_cmp_ge_u32 s5, 6\ns_cselect_b32 s68, s6, {WSEND}")
            A("v_lshlrev_b32 v16, 9, v0\nv_mov_b32 v17, s58")
        lds_wait(32, L_PROG, 12, "s_cmp_ge_u32", start, 16, "lws")
        A(f"s_lshl_b32 s69, s89, 9\ns_add_u32 s69, s69, {RK}\nv_lshlrev_b32 v14, 2, v0\ns_mov_b32 s94, 0x1000")
        A.label(top)
        exec_set(0xFFFFFFFF)
        if o["lnp"]:
            A(f"s_mov_b32 s69, {WSEND}")
        A(f"buffer_load_dword v15, v14, {WS_SRD}, s69 offen {o['lfl']}")
        A(f"ds_read_b32 v12, v32 offset:{L_PROG}")
        A("s_waitcnt lgkmcnt(0)")
        A("v_readfirstlane_b32 s93, v12")
        if post:
            A(f"s_cmp_lt_u32 s93, {m}\ns_cbranch_scc1 {skip}")
            exec_set(0xFF)
            A(f"buffer_store_dword v17, v16, {WS_SRD}, s68 offen sc1")
            A(f"s_mov_b32 s68, {WSEND}")
            exec_set(0xFFFFFFFF)
            A.label(skip)
        A("s_waitcnt vmcnt(0)")
        A("v_cmp_eq_u32 vcc, s58, v15")
        exec_set(FULL)
        A(f"s_bcnt1_i32_b32 s6, vcc_lo\ns_cmp_ge_u32 s6, {thr}\ns_cselect_b32 s6, 8, 0\nv_mov_b32 v12, s6")
        if not o["lnw"]:
            A(f"ds_write_b32 v32, v12 offset:{L_DEEP}")
        A(f"s_cbranch_scc1 {out}")
        A(f"s_cmp_ge_u32 s93, {stop}\ns_cbranch_scc1 {out}")
        A(f"s_sleep {o['lsl']}")
        A(f"s_sub_u32 s94, s94, 1\ns_cmp_lg_u32 s94, 0\ns_cbranch_scc1 {top}")
        A.label(out)

    FIN = "L_claimw" if o["dync"] is not None else "L_end"

    def fin():
        A("s_branch L_claimw" if o["dync"] is not None else "s_endpgm")

    def lagread(extra=0):
        if not o["h2"]:
            return
        pread, m0, d, mul, add, kmax = o["h2"]
        assert kmax <= 30
        add += extra
        out = A.fresh("lr_out")
        A(f"s_cmp_lg_u32 s82, 3\ns_cbranch_scc1 {out}")
        A(f"s_lshl_b32 s69, s89, 9\ns_add_u32 s69, s69, {RK}\nv_lshlrev_b32 v14, 2, v0")
        lds_wait(32, L_PROG, 12, "s_cmp_ge_u32", pread, 8, "lrs")
        exec_set(0xFFFFFFFF)
        A(f"buffer_load_dword v15, v14, {WS_SRD}, s69 offen sc1")
        A("s_waitcnt vmcnt(0)")
        A("v_cmp_eq_u32 vcc, s58, v15")
        exec_set(FULL)
        A(f"s_bcnt1_i32_b32 s6, vcc_lo\ns_mul_i32 s6, s6, {mul}\ns_add_i32 s6, s6, {add}\ns_max_i32 s6, s6, 0\ns_lshr_b32 s6, s6, 8\ns_min_u32 s6, s6, {kmax}\nv_mov_b32 v12, s6")
        A(f"ds_write_b32 v32, v12 offset:{L_DEEP}")
        A.label(out)

    def lagpost():
        pread, m0, d, mul, add, kmax = o["h2"]
        A(f"s_cmp_lt_u32 s5, 6\ns_cbranch_scc1 {FIN}")
        A(f"s_and_b32 s6, s4, 3\ns_mul_i32 s66, s6, {d}\ns_add_u32 s66, s66, {m0}\ns_lshl_b32 s68, s4, 2\ns_add_u32 s68, s68, {RK}")
        A("v_lshlrev_b32 v16, 9, v0\nv_mov_b32 v17, s58")
        lds_wait(32, L_PROG, 12, "s_cmp_ge_u32", "s66", 8, "lps")
        exec_set(0xFF)
        A(f"buffer_store_dword v17, v16, {WS_SRD}, s68 offen sc1")
        fin()

    def backoff(n):
        def f():
            if n:
                A(f"s_sleep {n}")
        return f

    def sum8():
        for i in range(4):
            for hf in (0, 2):
                a = 160 + 8 * i + hf
                A(f"v_pk_add_f32 v[{8 + 4 * i + hf}:{9 + 4 * i + hf}], v[{a}:{a + 1}], v[{a + 4}:{a + 5}]")
        for a, b in ((8, 12), (16, 20), (8, 16)):
            for hf in (0, 2):
                A(f"v_pk_add_f32 v[{a + hf}:{a + hf + 1}], v[{a + hf}:{a + hf + 1}], v[{b + hf}:{b + hf + 1}]")

    M12, M40 = 0x0FFF0FFF0FFF0FFF, 0x03FF03FF03FF03FF

    def gather_p(stem, sleep, f, tight=False, fast=False):
        ld = lambda i: f"buffer_load_dwordx4 {vr(160 + 4 * i, 4)}, v46, {WS_SRD}, s{70 + i // 4} offen offset:{768 * (i % 4)} {f}"
        if fast:
            gather_fast(stem, 160, ld, M12, 34, 26, o['fbb'])
        else:
            gather(stem, 8, 160, ld, M12, 34, 24, backoff(sleep), tight=tight)
        sum8()
        A("v_cvt_pk_bf16_f32 v24, v8, v9\nv_cvt_pk_bf16_f32 v25, v10, v11")

    def gather_y(stem, sleep, f, tight=False, fast=False):
        ld = lambda i: f"buffer_load_dwordx4 {vr(160 + 4 * i, 4)}, v46, {WS_SRD}, s{70 + i // 2} offen offset:{2560 * (i % 2)} {f}"
        if fast:
            gather_fast(stem, 160, ld, M40, 34, 26, o['fbc'])
        else:
            gather(stem, 8, 160, ld, M40, 34, 26, backoff(sleep), tight=tight)
        sum8()
        A("v_cvt_pk_bf16_f32 v12, v8, v9\nv_cvt_pk_bf16_f32 v13, v10, v11")
        unpack(8, 9, 12)
        unpack(10, 11, 13)
        A("v_pk_add_f32 v[8:9], v[8:9], v[60:61]\nv_pk_add_f32 v[10:11], v[10:11], v[62:63]")
        A("v_cvt_pk_bf16_f32 v24, v8, v9\nv_cvt_pk_bf16_f32 v25, v10, v11")

    def y_setup(jreg, breg, wait=True):
        A(f"s_mul_i32 s6, {jreg}, 160\nv_add_u32 v46, s6, v43\nv_lshlrev_b32 v49, 1, v46\nv_lshlrev_b32 v46, 2, v46")
        A(f"s_mul_i32 s6, {breg}, 1280")
        A(f"buffer_load_dwordx2 v[58:59], v49, {X_SRD}, s6 offen")
        A(f"s_mul_i32 s70, {breg}, {8 * 2560}\ns_add_u32 s70, s70, {YY}")
        A("s_add_u32 s71, s70, 5120\ns_add_u32 s72, s70, 10240\ns_add_u32 s73, s70, 15360")
        A(f"s_mul_i32 s6, {jreg}, 640\nv_mul_u32_u24 v5, 160, v2\nv_lshl_add_u32 v5, v1, 4, v5\nv_add_u32 v5, s6, v5")
        if wait:
            A("s_waitcnt vmcnt(0)")
            unpack(60, 61, 58)
            unpack(62, 63, 59)

    A("v_lshrrev_b32 v43, 1, v1\nv_lshlrev_b32 v43, 5, v43\nv_lshl_add_u32 v43, v2, 3, v43\nv_and_b32 v12, 1, v1\nv_lshl_add_u32 v43, v12, 2, v43")
    A(f"v_mov_b32 v45, {L_XJOIN}")
    A("v_lshlrev_b32 v46, 2, v43")
    tagbyte(34, 46)
    A("v_mul_u32_u24 v5, 192, v2\nv_lshl_add_u32 v5, v1, 4, v5")
    A("s_mov_b32 s65, 0")
    A(f"s_cmp_eq_u32 s88, 1\ns_cbranch_scc1 {'L_mk0' if o['ab'] & 4 else 'L_brole'}")
    if o["dync"] is None:
        A(f"s_cmp_eq_u32 s88, 2\ns_cbranch_scc1 {'L_mk0' if o['ab'] & 2 else 'L_crole'}")
    A("s_cmp_eq_u32 s82, 1\ns_cbranch_scc1 L_side")
    if o["hl"]:
        A("s_cmp_lg_u32 s82, 3\ns_cbranch_scc1 L_mk0")
        lagwatch(True)
        A("s_endpgm")
    if o["h2"]:
        lagread()
        A("s_cmp_lg_u32 s82, 2\ns_cbranch_scc1 L_mk0")
        lagpost()
    A.label("L_mk0")
    A(f"s_cmp_lg_u32 s82, 0\ns_cbranch_scc1 {'L_end' if o['dync'] is None else 'L_claim'}")
    A.label("L_mk")
    marker()
    A("s_add_u32 s65, s65, 1\ns_cmp_lt_u32 s65, 3\ns_cbranch_scc1 L_mk")
    fin()
    if o["dync"] is not None:
        A.label("L_claim")
        A(f"s_cmp_le_u32 s6, {o['dk']}\ns_cselect_b32 s66, {256 - o['dync']}, s56")
        lds_wait(32, L_PROG, 12, "s_cmp_ge_u32", "s66", 4, "cl")
        A("v_mov_b32 v14, 1")
        exec_set(1)
        A(f"buffer_atomic_add v14, v32, {DBG_SRD}, 0 offen offset:4 sc0 sc1")
        A("s_waitcnt vmcnt(0)")
        A("v_add_u32 v14, 1, v14")
        A(f"ds_write_b32 v32, v14 offset:{L_CLAIM}")
        A.label("L_claimw")
        exec_set(FULL)
        lds_wait(32, L_CLAIM, 12, "s_cmp_lg_u32", 0, o["dsl"], "clw")
        A("s_sub_u32 s91, s93, 1\ns_cmp_ge_u32 s91, 48\ns_cbranch_scc1 L_end")
        A("s_mov_b32 s65, 0")
        A("s_branch L_crole")
    A.label("L_side")
    if o["dync"] is not None:
        A("s_cmp_eq_u32 s88, 2\ns_cbranch_scc1 L_claimw")
    if o["noroles"]:
        A("s_endpgm")
    A("v_mov_b32 v27, s58")
    A("s_cmp_eq_u32 s88, 0\ns_cbranch_scc1 L_hrole")
    if o["ab"] & 8:
        A("s_endpgm")
    A("s_mov_b32 s65, s85")
    A(f"s_lshl_b32 s6, s4, 2\ns_add_u32 s6, s6, s65\ns_mul_i32 s70, s6, 6144\ns_add_u32 s70, s70, {PP}\ns_add_u32 s71, s70, 3072")
    A(f"s_mul_i32 s6, s4, 3\ns_add_u32 s6, s6, s65\ns_mul_i32 s72, s6, 768\ns_add_u32 s72, s72, {OO}")
    A(f"s_lshl_b32 s73, s65, 10\ns_lshl_b32 s6, s4, 5\ns_add_u32 s73, s73, s6\ns_add_u32 s73, s73, {PA}")
    gate(4)
    A("v_lshlrev_b32 v13, 2, v0\ns_mov_b32 s94, 0x8000")
    if o["r2d"]:
        A("s_cmp_eq_u32 s65, 2\ns_cbranch_scc1 L_rok")
    exec_set(0xFF)
    A.label("L_rp")
    A(f"buffer_load_dword v12, v13, {WS_SRD}, s73 offen sc1")
    A("s_waitcnt vmcnt(0)")
    A("v_cmp_ne_u32 vcc, s58, v12")
    A("s_cbranch_vccz L_rok")
    A("s_sleep 24")
    A("s_sub_u32 s94, s94, 1\ns_cmp_lg_u32 s94, 0\ns_cbranch_scc1 L_rp")
    A.label("L_rok")
    if o["preo"]:
        exec_set(M12)
        A(f"buffer_load_dwordx4 v[28:31], v5, {WS_SRD}, s72 offen {o['pfl']}")
    gather_p("rp", o["psleep"], "sc1 nt" if o["rnt"] else "sc1")
    dual(lambda f: A(f"buffer_store_dwordx4 v[24:27], v5, {WS_SRD}, s72 offen {f}"), o["ont"])
    fin()
    A.label("L_hrole")
    if o["ab"] & 1:
        A("s_endpgm")
    A(f"s_cmp_ge_u32 s4, {8 if o['cy2'] else 12}\ns_cbranch_scc1 {FIN}")
    A("s_lshr_b32 s65, s4, 2\ns_and_b32 s74, s4, 3")
    y_setup("s74", "s65")
    A(f"s_mul_i32 s75, s65, 2560\ns_add_u32 s75, s75, {HH}")
    if o["preg"]:
        exec_set(M40)
        A(f"buffer_load_dwordx4 v[28:31], v5, {WS_SRD}, s75 offen sc1")
        exec_set(FULL)
    gate(o["gh"])
    gather_y("hy", o["psleep"], "sc1 nt" if o["hnt"] else "sc1")
    A(f"buffer_store_dwordx4 v[24:27], v5, {WS_SRD}, s75 offen sc1")
    fin()

    def ashift(t):
        q = 28 if t & 1 else 36
        return q, "\n".join(
            f"v_mov_b32_dpp v{q + i}, v{24 + (i & 1)} row_shl:{2 * t + (i >> 1)} {DPPM}" for i in range(4))

    A.label("L_bearly")
    if o["h2"]:
        A(f"s_cmp_lg_u32 s65, {(o['h2'][0] - o['gb'] - 1) // 64}\ns_cbranch_scc1 L_bnolag")
        lagread(o["bex"])
        A.label("L_bnolag")
    early("b", o["gb"], M12, f"buffer_load_dwordx4 v[24:27], v5, {WS_SRD}, s73 offen sc1", "L_bgo")
    A.label("L_brole")
    if o["fixd"]:
        A(f"v_mov_b32 v12, {o['fixd'][0]}\nds_write_b32 v32, v12 offset:{L_DEEP}")
    A(f"v_add_u32 v47, {L_XB}, v4\ns_lshl_b32 s6, s82, 8\nv_add_u32 v44, s6, v47")
    A(f"s_mul_i32 s70, s92, {4 * 6144}\ns_add_u32 s70, s70, {PP + 3 * 6144}\ns_add_u32 s71, s70, 3072")
    A(f"s_mul_i32 s72, s89, 2560\ns_lshl_b32 s6, s90, 8\ns_add_u32 s72, s72, s6\ns_add_u32 s72, s72, {YY}")
    A(f"s_mul_i32 s73, s92, {3 * 768}\ns_add_u32 s73, s73, {OO}")
    if o["preg"]:
        A(f"s_mul_i32 s6, s82, {8 * 2560}\ns_add_u32 s6, s6, s72")
        exec_set(0xFFFF)
        A(f"buffer_load_dwordx4 v[24:27], v4, {WS_SRD}, s6 offen sc1")
        exec_set(FULL)
        A("s_waitcnt vmcnt(0)")
    A.label("L_b")
    A("s_cmp_lg_u32 s65, 3\ns_cbranch_scc1 L_bearly")
    if o["ab"] & 16:
        A("s_endpgm")
    lagwatch(False)
    closing(o["gb3"])
    if o["tlb"] & 2:
        exec_set(0xFFFF)
        A(f"buffer_load_dwordx4 v[192:195], v4, {WS_SRD}, s72 offen sc1")
        exec_set(FULL)
    gather_p("bp", o["bsleep3"], o["pld"], o["tight"] & 1, o["tight"] & 4)
    if o["stamps"] == 7:
        A("s_memrealtime s[100:101]")
    A.label("L_bgo")
    exec_set(FULL)
    A(f"v_mov_b32_dpp v26, v24 row_shl:1 {DPPM}\nv_mov_b32_dpp v27, v25 row_shl:1 {DPPM}")
    q = 24
    for t in range(6):
        nq, mv = ashift(t + 1)
        for f in range(4):
            A(f"v_mfma_f32_16x16x32_bf16 {vr(192 + 4 * f, 4)}, {vr(q, 4)}, {vr(64 + 16 * t + 4 * f, 4)}, {'0' if t == 0 else vr(192 + 4 * f, 4)}")
            if f == 0 and t < 5:
                A(mv)
        q = nq
    exec_set(0xFFFF)
    A("v_mov_b32 v193, v196\nv_mov_b32 v194, v200\nv_mov_b32 v195, v204")
    A("ds_write_b128 v44, v[192:195]")
    exec_set(1)
    A("ds_add_rtn_u32 v12, v45, v33")
    exec_set(0xFFFF)
    for i in range(4):
        A(f"ds_read_b128 {vr(8 + 4 * (i + 2), 4)}, v47 offset:{256 * i}")
    A("s_waitcnt lgkmcnt(4)")
    A("v_readfirstlane_b32 s6, v12")
    A("s_cmp_lg_u32 s6, 3\ns_cbranch_scc1 L_bnext")
    A("s_waitcnt lgkmcnt(2)")
    A("v_pk_add_f32 v[16:17], v[16:17], v[20:21]\nv_pk_add_f32 v[18:19], v[18:19], v[22:23]")
    A("s_waitcnt lgkmcnt(0)")
    A("v_pk_add_f32 v[24:25], v[24:25], v[28:29]\nv_pk_add_f32 v[26:27], v[26:27], v[30:31]")
    A("v_pk_add_f32 v[18:19], v[18:19], v[26:27]\nv_pk_add_f32 v[16:17], v[16:17], v[24:25]")
    A("v_and_or_b32 v19, v19, s59, v35")
    A(f"buffer_store_dwordx4 v[16:19], v4, {WS_SRD}, s72 offen {o['yst']}")
    if o["stamps"]:
        exec_set(FULL)
        A("s_cmp_lg_u32 s65, 3\ns_cbranch_scc1 L_bnext")
        stamp(4, 12, 14, o['stamps'] if o['stamps'] in (6, 7, 8) else 1)
        if o["stamps"] == 7:
            exec_set(1)
            A("v_mov_b32 v12, s100\nv_mov_b32 v13, s101")
            A("global_store_dwordx2 v14, v[12:13], s[98:99] offset:24")
            exec_set(FULL)
    A.label("L_bnext")
    exec_set(FULL)
    A("s_waitcnt lgkmcnt(0)")
    A("s_add_u32 s65, s65, 1\ns_cmp_eq_u32 s65, 4\ns_cbranch_scc1 L_end")
    A(f"s_add_u32 s73, s73, 768\ns_add_u32 s72, s72, {8 * 2560}")
    A("v_add_u32 v44, 1024, v44\nv_add_u32 v47, 1024, v47\nv_add_u32 v45, 4, v45")
    A("s_branch L_b")

    def mlp_late():
        C1 = -2.0 * 0.7978845608028654 * LOG2E
        C2 = C1 * 0.044715
        AF = 232
        stat_ops = [
            "v_dot2_f32_bf16 v14, v24, s62, 0\nv_dot2_f32_bf16 v15, v24, v24, 0",
            "v_dot2_f32_bf16 v14, v25, s62, v14\nv_dot2_f32_bf16 v15, v25, v25, v15",
            "",
            "v_permlane32_swap_b32 v14, v15\nv_add_f32 v14, v14, v15\nv_mov_b32 v15, v14",
            "v_permlane16_swap_b32 v14, v15\nv_add_f32 v14, v14, v15",
            f"v_add_f32_dpp v14, v14, v14 row_ror:8 {DPPM}",
            f"v_add_f32_dpp v14, v14, v14 row_ror:4 {DPPM}",
            f"v_add_f32_dpp v14, v14, v14 row_ror:2 {DPPM}",
            f"v_add_f32_dpp v14, v14, v14 row_ror:1 {DPPM}",
            "",
        ]
        A.label("L_crole")
        if o["fixd"]:
            A(f"v_mov_b32 v12, {o['fixd'][1]}\nds_write_b32 v32, v12 offset:{L_DEEP}")
        y_setup("s82", "3", not o["cfast"])
        A("v_lshrrev_b32 v12, 2, v1\nv_add_u32 v12, 3, v12\nv_and_b32 v12, 3, v12")
        A("v_and_b32 v13, 3, v0\nv_lshl_add_u32 v13, v2, 2, v13")
        A(f"v_lshlrev_b32 v52, 5, v12\nv_add_u32 v52, {L_XS}, v52")
        A(f"v_mul_u32_u24 v7, 1280, v12\nv_lshl_add_u32 v7, v2, 4, v7\ns_mul_i32 s6, s82, 320\ns_add_u32 s6, s6, {L_H}\nv_add_u32 v7, s6, v7")
        A(f"v_lshlrev_b32 v42, 5, v13\nv_lshrrev_b32 v47, 2, v1\nv_lshl_add_u32 v47, v47, 9, v42")
        A("v_lshlrev_b32 v13, 2, v13\ns_lshl_b32 s6, s91, 6")
        A(f"buffer_load_dword v41, v13, {B1_SRD}, s6 offen")
        A(f"s_lshl_b32 s7, s82, 3\nv_lshl_add_u32 v44, v1, 5, s7\nv_add_u32 v48, {L_CS}, v44\nv_lshl_add_u32 v44, v2, 9, v44\nv_add_u32 v44, {L_XB}, v44")
        A(f"v_add_u32 v6, 3, v2\nv_and_b32 v6, 3, v6\nv_mul_u32_u24 v6, {48 * 2560}, v6\nv_lshl_add_u32 v6, v1, 4, v6")
        A(f"v_add_u32 v50, {L_H}, v49")
        A(f"s_lshl_b32 s7, s82, 2\ns_add_u32 s7, s7, {L_XS}\nv_lshrrev_b32 v51, 5, v0\nv_lshl_add_u32 v51, v51, 4, s7")
        A(f"v_mov_b32 v53, {f2u(C1)}\ns_mov_b32 s79, {f2u(C2)}")
        if o["dync"] is not None:
            A("s_mov_b32 s13, s91")
        else:
            A("s_sub_u32 s6, s90, 10\ns_lshl_b32 s6, s6, 3\ns_add_u32 s13, s6, s89")
        A("s_mul_i32 s6, s13, 52\ns_lshr_b32 s6, s6, 8\ns_mul_i32 s7, s6, 5\ns_sub_u32 s7, s13, s7\ns_and_b32 s6, s6, 3\ns_sub_u32 s14, 3, s6")
        A("s_lshl_b32 s7, s7, 6\ns_mul_i32 s78, s82, 320\ns_add_u32 s78, s78, s7")
        A("v_and_b32 v54, 7, v0\nv_lshlrev_b32 v55, 4, v54\nv_lshlrev_b32 v54, 2, v54")
        A("v_bfe_u32 v12, v0, 4, 1\nv_lshl_add_u32 v54, v12, 1, v54\nv_lshrrev_b32 v12, 5, v0\nv_add_u32 v54, v54, v12\nv_lshlrev_b32 v54, 1, v54")
        A("v_lshrrev_b32 v12, 3, v0\nv_mul_u32_u24 v12, 2560, v12\nv_add_u32 v55, v55, v12")
        A(f"buffer_load_ushort v57, v54, {B2_SRD}, s78 offen")
        A(f"s_lshl_b32 s76, s78, 1\ns_mul_i32 s6, s14, {48 * 2560}\ns_add_u32 s76, s76, s6\ns_add_u32 s76, s76, {OP}")
        A(f"s_mul_i32 s6, s14, 1280\ns_add_u32 s78, s78, s6\ns_add_u32 s6, s78, {L_H}\nv_add_u32 v56, s6, v54")
        A(f"s_mov_b32 s74, {HH}")
        A("s_mul_i32 s12, s82, 3\ns_min_u32 s12, s12, 8")
        A(f"s_mul_i32 s75, s91, 2560\ns_add_u32 s75, s75, {OP}\ns_lshl_b32 s6, s12, 8\ns_add_u32 s75, s75, s6")
        A(f"s_cmp_lt_u32 s82, 2\ns_cselect_b32 s14, s75, {WSEND}")
        if o["preg"]:
            for i in range(3):
                A(f"buffer_load_dwordx4 {vr(240 + 4 * i, 4)}, v6, {WS_SRD}, {'s75' if i < 2 else 's14'} offen offset:{256 * i} sc1")
        if o["cfast"]:
            assert o["cy2"] and o["dync"] is not None
            A("v_mov_b32 v24, 0\nv_mov_b32 v25, 0")
            exec_set(M40)
            A(f"buffer_load_dwordx4 v[24:27], v5, {WS_SRD}, s74 offen sc1")
            A(f"buffer_load_dwordx4 v[20:23], v5, {WS_SRD}, s74 offen offset:2560 sc1")
            exec_set(FULL)
            A("s_branch L_cw")
        else:
            A("s_waitcnt vmcnt(0)")
            A("v_lshlrev_b32 v57, 16, v57")
            unpack(40, 41, 41)
        A.label("L_c")
        if o["cfast"]:
            A("s_cmp_eq_u32 s65, 2\ns_cbranch_scc1 L_c2")
            A("s_mov_b32 s94, 0x8000")
            exec_set(M40)
            for i in range(4):
                A(f"v_mov_b32 v{24 + i}, v{20 + i}")
            A("s_branch L_cchk")
        if o["dync"] is None:
            A("s_cmp_lg_u32 s82, 0\ns_cbranch_scc1 L_coth")
            marker()
        A.label("L_coth")
        A("s_cmp_eq_u32 s65, 2\ns_cbranch_scc1 L_cw")
        if o["cex"] < 0 and o["h2"][0] <= 128 + o["gc"]:
            A(f"s_cmp_lg_u32 s65, {(o['h2'][0] - o['gc'] - 1) // 64}\ns_cbranch_scc1 L_cnolag")
            lagread(-o["cex"])
            A.label("L_cnolag")
        if o["dync"] is None:
            gate(o["gc"])
        A.label("L_cpoll")
        A("v_mov_b32 v24, 0\nv_mov_b32 v25, 0\ns_mov_b32 s94, 0x8000")
        exec_set(M40)
        A.label("L_ctop")
        A(f"buffer_load_dwordx4 v[24:27], v5, {WS_SRD}, s74 offen sc1")
        A("s_waitcnt vmcnt(0)")
        A.label("L_cchk")
        A("v_cmp_ne_u32 vcc, s58, v27")
        A("s_cbranch_vccz L_cgo")
        A(f"s_sleep {o['csl']}")
        A("s_sub_u32 s94, s94, 1\ns_cmp_lg_u32 s94, 0\ns_cbranch_scc1 L_ctop")
        A.label("L_cgo")
        A("ds_write_b64 v50, v[24:25]")
        exec_set(FULL)
        for op in stat_ops:
            A(op)
        exec_set(0x0000000100000001)
        A("ds_write_b32 v51, v14")
        exec_set(FULL)
        A("v_add_u32 v51, 32, v51\nv_add_u32 v50, 1280, v50")
        A("s_add_u32 s65, s65, 1\ns_add_u32 s74, s74, 2560\ns_cmp_lt_u32 s65, 3\ns_cbranch_scc1 L_c")
        A("s_branch L_ctail")
        A.label("L_cw")
        A(f"v_mul_u32_u24 v3, {8 * 3072}, v2\nv_lshl_add_u32 v3, v1, 2, v3")
        A(f"v_mul_u32_u24 v13, {8 * 1280}, v2\nv_lshl_add_u32 v13, v1, 3, v13")
        A(f"s_mul_i32 s9, s82, {160 * 3072}\ns_lshl_b32 s6, s91, 6\ns_add_u32 s9, s9, s6")
        A(f"s_mul_i32 s10, s91, {32 * 1280}\ns_lshl_b32 s6, s12, 7\ns_add_u32 s10, s10, s6")
        A("s_cmp_lt_u32 s82, 2\ns_cselect_b32 s11, s10, 0x1000000")
        if not o["cfast"]:
            A("v_mov_b32 v24, 0\nv_mov_b32 v25, 0")
        for i in range(4):
            A(f"v_mov_b32 v{28 + i}, s62")
        lagwatch(False)
        if o["dync"] is not None:
            if o["dcex"]:
                A(f"v_mov_b32 v12, {o['dcex']}\nds_max_u32 v32, v12 offset:{L_DEEP}")
        elif o["cex"] == 0:
            lagread()
        elif o["cex"] < 0 and o["h2"][0] > 128 + o["gc"]:
            lagread(-o["cex"])
        elif o["cex"] > 1:
            A(f"v_mov_b32 v12, {o['cex']}\nds_write_b32 v32, v12 offset:{L_DEEP}")
        closing(o["clate"])
        if o["cy2"]:
            A(f"buffer_load_dwordx2 v[38:39], v49, {X_SRD}, 0 offen offset:2560")
        else:
            exec_set(M40)
            A(f"buffer_load_dwordx4 v[24:27], v5, {WS_SRD}, s74 offen sc1")
            exec_set(FULL)
        for t in range(5):
            for q in range(4):
                for lo in range(2):
                    A(f"buffer_load_dword v{160 + 8 * t + 2 * q + lo}, v3, {W1_SRD}, s9 offen offset:{3072 * lo} {o['cfl']}")
                if (t, q) != (4, 3):
                    A(f"s_add_u32 s9, s9, {2 * 3072 if q < 3 else 26 * 3072}")
        for jj in range(8):
            if jj == 4 and o["cfast"]:
                A("s_waitcnt vmcnt(52)")
            if jj == 7:
                A("s_waitcnt vmcnt(53)")
            for i in range(3):
                A(f"buffer_load_dwordx2 {vr(200 + 16 * i + 2 * jj, 2)}, v13, {W2_SRD}, {'s10' if i < 2 else 's11'} offen offset:{128 * i} {o['cfl']}")
            if jj < 7:
                A("s_add_u32 s10, s10, 1280\ns_add_u32 s11, s11, 1280")
        for t in range(5):
            A(f"s_waitcnt vmcnt({8 * (4 - t) + 24})")
            frags(64 + 8 * t, 160 + 8 * t)
        for t in range(5):
            for f in range(2):
                A(f"v_mfma_f32_16x16x32_bf16 {vr(12 + 4 * f, 4)}, v[28:31], {vr(64 + 8 * t + 4 * f, 4)}, {'0' if t == 0 else vr(12 + 4 * f, 4)}")
        exec_set(0xFFFF)
        A("ds_write2_b32 v48, v12, v16 offset0:0 offset1:1")
        exec_set(FULL)
        A("s_waitcnt vmcnt(0)")
        for i in range(3):
            frags2(104 + 16 * i, 200 + 16 * i)
        if o["cfast"]:
            A("v_lshlrev_b32 v57, 16, v57")
            unpack(40, 41, 41)
            A("s_mov_b32 s94, 0x8000")
            exec_set(M40)
            A("s_branch L_cchk")
            A.label("L_c2")
        if o["cy2"]:
            unpack(60, 61, 38)
            unpack(62, 63, 39)
            for i in range(4):
                A(f"s_sub_u32 s{70 + i}, s{70 + i}, {8 * 2560}")
            gather_y("c2", o["c2s"], "sc1")
            for i in range(4):
                A(f"s_add_u32 s{70 + i}, s{70 + i}, {8 * 2560}")
            unpack(60, 61, 58)
            unpack(62, 63, 59)
            A("s_branch L_cgo")
        else:
            A("s_mov_b32 s94, 0x8000")
            exec_set(M40)
            A("s_branch L_cchk")
        A.label("L_ctail")
        for t in range(5):
            A(f"ds_read_b128 {vr(AF + 4 * t, 4)}, v7 offset:{64 * t}")
        if o["twop"]:
            A("s_mov_b32 s10, 0xffff0000\ns_mov_b32 s11, -1\ns_mov_b32 s9, 4")
            A("s_waitcnt lgkmcnt(0)")
            A("s_branch L_cmm")
            A.label("L_cb")
            A("s_mov_b32 s9, 8")
            A("v_add_u32 v44, 2048, v44\nv_add_u32 v47, 2048, v47")
        A("v_mov_b32 v24, 0\nv_mov_b32 v25, 0")
        if o["stamps"] == 6:
            A("s_memrealtime s[100:101]")
        closing(o["gc3"])
        if o["tlb"] & 4:
            for i in range(3):
                A(f"buffer_load_dwordx4 {vr(200 + 4 * i, 4)}, v6, {WS_SRD}, {'s75' if i < 2 else 's14'} offen offset:{256 * i} sc1")
        if o["tlb"] & 8:
            A(f"buffer_load_ushort v212, v54, {OUT_SRD}, s78 offen")
            for i in range(6):
                A(f"s_add_u32 s6, s76, {20480 * i}")
                A(f"buffer_load_dwordx4 {vr(204 + 4 * i, 4)}, v55, {WS_SRD}, s6 offen sc1")
        gather_y("cy", o["csleep3"], o["yld"], o["tight"] & 2, o["tight"] & 8)
        if o["stamps"] == 1:
            A("s_memrealtime s[100:101]")
        A("ds_write_b64 v50, v[24:25]")
        exec_set(FULL)
        if o["twop"]:
            A("s_mov_b64 s[10:11], 0xffff")
        A.label("L_cmm")

        def place(t):
            out = []
            for i in range(4):
                n = 2 * t + (i >> 1)
                out.append(f"v_mov_b32_dpp v{AF + 4 * t + i}, v{24 + (i & 1)} {'row_shl:%d' % n if n else 'quad_perm:[0,1,2,3]'} row_mask:0xf bank_mask:0x1")
            return "\n".join(out)

        A(place(0))
        for t in range(5):
            for f in range(2):
                A(f"v_mfma_f32_16x16x32_bf16 {vr(192 + 4 * f, 4)}, {vr(AF + 4 * t, 4)}, {vr(64 + 8 * t + 4 * f, 4)}, {'0' if t == 0 else vr(192 + 4 * f, 4)}")
                if f == 0 and t < 4:
                    A(place(t + 1))
                A(stat_ops[2 * t + f])
        exec_set(0x0000000100000001)
        A("ds_write_b32 v51, v14")
        exec_set(FULL)
        A("ds_write2_b32 v44, v192, v196 offset0:0 offset1:1")
        exec_set(1)
        A("ds_add_u32 v45, v33")
        exec_set(FULL)
        A("s_mov_b32 s94, 0x100000")
        A.label("L_cjoin")
        A("ds_read_b32 v28, v45")
        A("ds_read_b128 v[20:23], v52")
        A("ds_read_b128 v[36:39], v52 offset:16")
        A(f"ds_read_b128 v[8:11], v47 offset:{L_XB}")
        A(f"ds_read_b128 v[12:15], v47 offset:{L_XB + 16}")
        A(f"ds_read_b128 v[160:163], v42 offset:{L_CS}")
        A(f"ds_read_b128 v[164:167], v42 offset:{L_CS + 16}")
        A("s_waitcnt lgkmcnt(6)")
        A("v_readfirstlane_b32 s6, v28")
        A(f"s_cmp_ge_u32 s6, {'s9' if o['twop'] else 4}\ns_cbranch_scc1 L_cjoined")
        A("s_waitcnt lgkmcnt(0)")
        A("s_sub_u32 s94, s94, 1\ns_cmp_lg_u32 s94, 0\ns_cbranch_scc1 L_cjoin")
        A.label("L_cjoined")
        A("s_waitcnt lgkmcnt(4)")
        A("v_pk_add_f32 v[20:21], v[20:21], v[22:23]\nv_pk_add_f32 v[36:37], v[36:37], v[38:39]")
        A("v_add_f32 v20, v20, v21\nv_add_f32 v21, v36, v37")
        ln_scalars(20, 21, 22)
        A("s_waitcnt lgkmcnt(0)")
        A("v_pk_add_f32 v[8:9], v[8:9], v[12:13]\nv_pk_add_f32 v[10:11], v[10:11], v[14:15]")
        A("v_pk_add_f32 v[160:161], v[160:161], v[162:163]\nv_pk_add_f32 v[164:165], v[164:165], v[166:167]")
        A("v_pk_add_f32 v[8:9], v[8:9], v[10:11]\nv_pk_add_f32 v[160:161], v[160:161], v[164:165]")
        A("v_fma_f32 v8, -v20, v160, v8\nv_fma_f32 v9, -v20, v161, v9\nv_mul_f32 v8, v8, v21\nv_mul_f32 v9, v9, v21")
        A("v_cvt_pk_bf16_f32 v10, v8, v9")
        unpack(8, 9, 10)
        A("v_pk_add_f32 v[8:9], v[8:9], v[40:41]")
        A("v_cvt_pk_bf16_f32 v10, v8, v9")
        unpack(8, 9, 10)
        A("v_pk_mul_f32 v[10:11], v[8:9], v[8:9]")
        A("v_fma_f32 v10, v10, s79, v53\nv_fma_f32 v11, v11, s79, v53")
        A("v_pk_mul_f32 v[10:11], v[10:11], v[8:9]")
        A("v_exp_f32 v10, v10\nv_exp_f32 v11, v11\nv_add_f32 v10, 1.0, v10\nv_add_f32 v11, 1.0, v11\nv_rcp_f32 v10, v10\nv_rcp_f32 v11, v11")
        A("v_pk_mul_f32 v[8:9], v[8:9], v[10:11]")
        A("v_cvt_pk_bf16_f32 v24, v8, v9")
        for i in range(1, 4):
            A(f"v_mov_b32_dpp v{24 + i}, v24 row_shl:{i} {DPPM}")
        for i in range(12):
            A(f"v_mfma_f32_16x16x32_bf16 {vr(192 + 4 * i, 4)}, v[24:27], {vr(104 + 4 * i, 4)}, 0")
        if o["twop"]:
            A("s_mov_b64 exec, s[10:11]")
        for i in range(3):
            r = 192 + 16 * i
            A(f"v_mov_b32 v{r + 1}, v{r + 4}\nv_mov_b32 v{r + 2}, v{r + 8}\nv_and_or_b32 v{r + 3}, v{r + 12}, s59, v35")
            A(f"buffer_store_dwordx4 {vr(r, 4)}, v6, {WS_SRD}, {'s75' if i < 2 else 's14'} offen offset:{256 * i} {o['ost']}")
        if o["twop"]:
            exec_set(FULL)
            A("s_cmp_eq_u32 s9, 4\ns_cbranch_scc1 L_cb")
        if o["stamps"]:
            A("s_cmp_lg_u32 s82, 0\ns_cbranch_scc1 L_nostamp5")
            if o["stamps"] in (7, 8):
                stamp(5, 12, 14)
            if o["stamps"] in (1, 6):
                stamp(5, 12, 14)
                exec_set(1)
                A("v_mov_b32 v12, s100\nv_mov_b32 v13, s101")
                A("global_store_dwordx2 v14, v[12:13], s[98:99] offset:16")
                exec_set(FULL)
            A.label("L_nostamp5")
        A("s_cmp_ge_u32 s13, 20\ns_cbranch_scc1 L_end")

    if o["clate"] is not None:
        mlp_late()
    else:
        A.label("L_cearly")
        early("c", o["gc"], M40, f"buffer_load_dwordx4 v[24:27], v5, {WS_SRD}, s74 offen sc1", "L_cgo")
        A.label("L_crole")
        C1 = -2.0 * 0.7978845608028654 * LOG2E
        C2 = C1 * 0.044715
        y_setup("s82", "3")
        A(f"v_lshlrev_b32 v47, 4, v40\nv_add_u32 v47, {L_XB}, v47")
        A(f"s_lshl_b32 s7, s82, 2\ns_add_u32 s7, s7, {L_XB}\nv_lshl_add_u32 v44, v1, 5, s7")
        A(f"v_add_u32 v50, {L_H}, v49")
        A(f"s_lshl_b32 s7, s82, 2\ns_add_u32 s7, s7, {L_XS}\nv_lshrrev_b32 v51, 5, v0\nv_lshl_add_u32 v51, v51, 4, s7")
        A(f"v_mov_b32 v52, {L_XS}\nv_mov_b32 v53, {f2u(C1)}\ns_mov_b32 s79, {f2u(C2)}")
        A(f"s_mul_i32 s6, s82, 768\ns_add_u32 s6, s6, {L_OD}\nv_add_u32 v7, s6, v4\nv_mov_b32 v6, v7")
        A("s_sub_u32 s6, s90, 10\ns_lshl_b32 s6, s6, 3\ns_add_u32 s13, s6, s89")
        A("s_mul_i32 s6, s13, 52\ns_lshr_b32 s6, s6, 8\ns_mul_i32 s7, s6, 5\ns_sub_u32 s7, s13, s7\ns_and_b32 s6, s6, 3\ns_sub_u32 s14, 3, s6")
        A("s_lshl_b32 s7, s7, 6\ns_mul_i32 s78, s82, 320\ns_add_u32 s78, s78, s7")
        A("v_and_b32 v54, 7, v0\nv_lshlrev_b32 v55, 4, v54\nv_lshlrev_b32 v54, 2, v54")
        A("v_bfe_u32 v12, v0, 4, 1\nv_lshl_add_u32 v54, v12, 1, v54\nv_lshrrev_b32 v12, 5, v0\nv_add_u32 v54, v54, v12\nv_lshlrev_b32 v54, 1, v54")
        A("v_lshrrev_b32 v12, 3, v0\nv_mul_u32_u24 v12, 2560, v12\nv_add_u32 v55, v55, v12")
        A(f"buffer_load_ushort v57, v54, {B2_SRD}, s78 offen")
        A(f"s_lshl_b32 s76, s78, 1\ns_mul_i32 s6, s14, {48 * 2560}\ns_add_u32 s76, s76, s6\ns_add_u32 s76, s76, {OP}")
        A(f"s_mul_i32 s6, s14, 1280\ns_add_u32 s78, s78, s6\ns_add_u32 s6, s78, {L_H}\nv_add_u32 v56, s6, v54")
        A(f"s_mov_b32 s74, {HH}")
        A(f"s_mul_i32 s11, s91, 2560\ns_add_u32 s11, s11, {OP}\ns_lshl_b32 s6, s12, 8\ns_add_u32 s11, s11, s6\ns_add_u32 s75, s11, {3 * 48 * 2560}")
        A(f"s_add_u32 s9, s11, {48 * 2560}\ns_add_u32 s10, s11, {2 * 48 * 2560}")
        A(f"s_cmp_lt_u32 s82, 2\ns_cselect_b32 s14, s75, {WSEND}\ns_cselect_b32 s15, 0xffff, 0")
        if o["preg"]:
            A("s_mov_b32 exec_hi, s15")
            for b, sr in enumerate(("s11", "s9", "s10", "s75")):
                A(f"buffer_load_dwordx4 {vr(240 + 4 * b, 4)}, v4, {WS_SRD}, {sr} offen sc1")
            exec_set(FULL)
        A("s_waitcnt vmcnt(0)")
        A("v_lshlrev_b32 v57, 16, v57")
        A.label("L_c")
        A("v_mov_b32 v24, 0\nv_mov_b32 v25, 0")
        A("s_cmp_lg_u32 s65, 3\ns_cbranch_scc1 L_cearly")
        exec_set(M48)
        for b in range(3):
            A(f"ds_read_b128 {vr(240 + 4 * b, 4)}, v6 offset:{3072 * b}")
        exec_set(FULL)
        if o["ab"] & 32:
            A("s_endpgm")
        closing(o["gc3"])
        gather_y("cy", o["csleep3"], o["yld"], o["tight"] & 2, o["tight"] & 8)
        if o["stamps"] == 1:
            A("s_memrealtime s[100:101]")
        A.label("L_cgo")
        A("ds_write_b64 v50, v[24:25]")
        exec_set(FULL)
        A(f"v_mov_b32_dpp v26, v24 row_shl:1 {DPPM}\nv_mov_b32_dpp v27, v25 row_shl:1 {DPPM}")
        stat_ops = [
            "v_dot2_f32_bf16 v14, v24, s62, 0\nv_dot2_f32_bf16 v15, v24, v24, 0",
            "v_dot2_f32_bf16 v14, v25, s62, v14\nv_dot2_f32_bf16 v15, v25, v25, v15",
            "",
            "v_permlane32_swap_b32 v14, v15\nv_add_f32 v14, v14, v15\nv_mov_b32 v15, v14",
            "v_permlane16_swap_b32 v14, v15\nv_add_f32 v14, v14, v15",
            f"v_add_f32_dpp v14, v14, v14 row_ror:8 {DPPM}",
            f"v_add_f32_dpp v14, v14, v14 row_ror:4 {DPPM}",
            f"v_add_f32_dpp v14, v14, v14 row_ror:2 {DPPM}",
            f"v_add_f32_dpp v14, v14, v14 row_ror:1 {DPPM}",
            "",
        ]
        q = 24
        for t in range(5):
            nq, mv = ashift(t + 1)
            for f in range(2):
                A(f"v_mfma_f32_16x16x32_bf16 {vr(192 + 4 * f, 4)}, {vr(q, 4)}, {vr(64 + 8 * t + 4 * f, 4)}, {'0' if t == 0 else vr(192 + 4 * f, 4)}")
                if f == 0 and t < 4:
                    A(mv)
                A(stat_ops[2 * t + f])
            q = nq
        exec_set(0x0000000100000001)
        A("ds_write_b32 v51, v14")
        exec_set(0xFFFF)
        A("ds_write2_b32 v44, v192, v196 offset0:0 offset1:4")
        exec_set(1)
        A("ds_add_u32 v45, v33")
        exec_set(FULL)
        A("s_mov_b32 s94, 0x100000")
        A.label("L_cjoin")
        A("ds_read_b32 v28, v45")
        A("ds_read_b128 v[20:23], v52")
        A("ds_read_b128 v[36:39], v52 offset:16")
        A("ds_read_b128 v[8:11], v47")
        A("s_cmp_lg_u32 s65, 3\ns_cbranch_scc1 L_cheld")
        A("s_mov_b32 exec_hi, s15")
        for b, sr in enumerate(("s11", "s9", "s10")):
            A(f"buffer_store_dwordx4 {vr(240 + 4 * b, 4)}, v4, {WS_SRD}, {sr} offen sc1")
        exec_set(FULL)
        A("s_mov_b32 s65, 4")
        A.label("L_cheld")
        A("s_waitcnt lgkmcnt(3)")
        A("v_readfirstlane_b32 s6, v28")
        A("s_cmp_eq_u32 s6, 4\ns_cbranch_scc1 L_cjoined")
        A("s_waitcnt lgkmcnt(0)")
        A("s_sub_u32 s94, s94, 1\ns_cmp_lg_u32 s94, 0\ns_cbranch_scc1 L_cjoin")
        A.label("L_cjoined")
        A("s_waitcnt lgkmcnt(1)")
        A("v_pk_add_f32 v[20:21], v[20:21], v[22:23]\nv_pk_add_f32 v[36:37], v[36:37], v[38:39]")
        A("v_add_f32 v20, v20, v21\nv_add_f32 v21, v36, v37")
        ln_scalars(20, 21, 22)
        A("s_waitcnt lgkmcnt(0)")
        A("v_pk_add_f32 v[8:9], v[8:9], v[10:11]\nv_add_f32 v8, v8, v9")
        A("v_fma_f32 v8, -v20, v42, v8\nv_mul_f32 v8, v8, v21")
        rne(8)
        A("v_add_f32 v8, v8, v41")
        rne(8)
        A("v_mul_f32 v9, v8, v8\nv_fma_f32 v9, v9, s79, v53\nv_mul_f32 v9, v9, v8\nv_exp_f32 v9, v9\nv_add_f32 v9, 1.0, v9\nv_rcp_f32 v9, v9\nv_mul_f32 v8, v8, v9")
        A(f"v_mov_b32_dpp v9, v8 row_shl:1 {DPPM}")
        A("v_cvt_pk_bf16_f32 v24, v8, v9")
        for i in range(1, 4):
            A(f"v_mov_b32_dpp v{24 + i}, v24 row_shl:{2 * i} {DPPM}")
        for i in range(12):
            A(f"v_mfma_f32_16x16x32_bf16 {vr(192 + 4 * i, 4)}, v[24:27], {vr(104 + 4 * i, 4)}, 0")
        exec_set(0xFFFF)
        A("s_cmp_lg_u32 s65, 4\ns_cbranch_scc1 L_chold")

        def pack(i):
            r = 192 + 16 * i
            A(f"v_mov_b32 v{r + 1}, v{r + 4}\nv_mov_b32 v{r + 2}, v{r + 8}\nv_and_or_b32 v{r + 3}, v{r + 12}, s59, v35")

        for i in range(3):
            pack(i)
            A(f"buffer_store_dwordx4 {vr(192 + 16 * i, 4)}, v4, {WS_SRD}, {'s75' if i < 2 else 's14'} offen offset:{256 * i} sc1")
        exec_set(FULL)
        if o["stamps"]:
            A("s_cmp_lg_u32 s82, 0\ns_cbranch_scc1 L_nostamp5")
            stamp(5, 12, 14, 1)
            if o["stamps"] == 1:
                exec_set(1)
                A("v_mov_b32 v12, s100\nv_mov_b32 v13, s101")
                A("global_store_dwordx2 v14, v[12:13], s[98:99] offset:16")
                exec_set(FULL)
            A.label("L_nostamp5")
        A("s_cmp_ge_u32 s13, 20\ns_cbranch_scc1 L_end")
    A("ds_read_u16 v29, v56")
    for i in range(5):
        A(f"s_add_u32 s{70 + i}, s76, {20480 * (i + 1)}")
    A("s_mov_b32 s94, 0x8000")
    if o["dsleep0"]:
        A(f"s_sleep {o['dsleep0']}")
    A.label("L_d")
    for i in range(6):
        A(f"buffer_load_dwordx4 {vr(160 + 4 * i, 4)}, v55, {WS_SRD}, s{76 if i == 0 else 69 + i} offen {o['old']}")
    for i in range(3):
        a = 160 + 8 * i
        A(f"s_waitcnt vmcnt({4 - 2 * i})")
        A(f"v_xor_b32 v{a + 3}, v{a + 3}, v35\nv_xor_b32 v{a + 7}, v{a + 7}, v35")
        A(f"v_or3_b32 v26, v{a + 3}, v{a + 7}, {'v32' if i == 0 else 'v26'}")
        if i == 2:
            A("v_cmp_ne_u32_sdwa vcc, v26, v32 src0_sel:BYTE_0 src1_sel:DWORD")
        for hf in (0, 2):
            A(f"v_pk_add_f32 v[{8 + 4 * i + hf}:{9 + 4 * i + hf}], v[{a + hf}:{a + hf + 1}], v[{a + hf + 4}:{a + hf + 5}]")
        if i:
            for hf in (0, 2):
                A(f"v_pk_add_f32 v[{8 + hf}:{9 + hf}], v[{8 + hf}:{9 + hf}], v[{8 + 4 * i + hf}:{9 + 4 * i + hf}]")
    A("s_cbranch_vccz L_dok")
    if o["dsleep"]:
        A(f"s_sleep {o['dsleep']}")
    A("s_sub_u32 s94, s94, 1\ns_cmp_lg_u32 s94, 0\ns_cbranch_scc1 L_d")
    A.label("L_dok")
    if o["stamps"] == 8:
        A("s_memrealtime s[100:101]")
    A("v_permlane32_swap_b32 v8, v9\nv_permlane32_swap_b32 v10, v11")
    A("v_add_f32 v8, v8, v9\nv_add_f32 v10, v10, v11")
    A("v_permlane16_swap_b32 v8, v10\nv_add_f32 v8, v8, v10")
    A(f"v_add_f32_dpp v8, v8, v8 row_ror:8 {DPPM}")
    A("s_waitcnt lgkmcnt(0)")
    A("v_lshlrev_b32 v29, 16, v29")
    rne(8)
    A("v_add_f32 v8, v8, v57")
    rne(8)
    A("v_add_f32 v8, v8, v29\nv_cvt_pk_bf16_f32 v8, v8, v8")
    exec_set(0x00FF00FF00FF00FF)
    A(f"buffer_store_short v8, v54, {OUT_SRD}, s78 offen")
    A(f"s_or_b32 s6, s13, s82\ns_cmp_eq_u32 s6, 0\ns_cselect_b32 s6, {EP}, {WSEND}\ns_add_u32 s7, s57, 1\nv_mov_b32 v9, s7")
    exec_set(1)
    A(f"buffer_store_dword v9, v32, {WS_SRD}, s6 offen")
    if o["stamps"]:
        exec_set(FULL)
        A("s_cmp_lg_u32 s82, 0\ns_cbranch_scc1 L_end")
        stamp(6, 12, 14, o['stamps'] if o['stamps'] in (6, 7, 8) else 1)
        if o["stamps"] == 8:
            exec_set(1)
            A("v_mov_b32 v12, s100\nv_mov_b32 v13, s101")
            A("global_store_dwordx2 v14, v[12:13], s[98:99] offset:8")
    A.label("L_end")
    A("s_endpgm")
    if o["clate"] is None:
        A.label("L_chold")
        for i in range(3):
            pack(i)
            A(f"ds_write_b128 v7, {vr(192 + 16 * i, 4)} offset:{256 * i}")
        exec_set(FULL)
        A("s_add_u32 s65, s65, 1\ns_add_u32 s74, s74, 2560")
        A("v_add_u32 v44, 512, v44\nv_add_u32 v47, 512, v47\nv_add_u32 v45, 4, v45\nv_add_u32 v51, 32, v51\nv_add_u32 v52, 32, v52")
        A("v_add_u32 v50, 1280, v50\nv_add_u32 v7, 3072, v7")
        A("s_branch L_c")
    A.lines.extend(cold)

    def ntfix(l):
        if o["lnt"] and l.startswith("buffer_load") and WS_SRD in l and not l.endswith(" nt"):
            return l + " nt"
        if o["xnt"] and l.startswith("buffer_load") and any(s in l for s in (X_SRD, B1_SRD, B2_SRD)):
            return l + " nt"
        if o["snt"] and l.startswith("buffer_store") and WS_SRD in l and l.endswith("sc1"):
            return l + " nt"
        return l

    A.lines = [ntfix(l) for l in A.lines]
    body, nn = pad(A.lines)
    lds = o["lds"] or (L_END + 255) // 256 * 256
    assert lds >= L_END
    head = open("cdna_kernels/" + NAME + ".s.ref").read().split("; Override launch")[0]
    out = head
    out += f"; @launch grid=(256,1,1) block=(512,1,1) lds={lds}\n"
    out += '.amdgcn_target "amdgcn-amd-amdhsa--gfx950"\n.text\n'
    out += f".globl {NAME}_kernel\n.p2align 8\n.type {NAME}_kernel,@function\n{NAME}_kernel:\n"
    out += "\n".join(("" if l.endswith(":") else "    ") + l for l in body) + "\n"
    out += "    s_endpgm\n"
    out += f""".section .rodata,"a"
.p2align 6
.amdhsa_kernel {NAME}_kernel
  .amdhsa_next_free_vgpr 256
  .amdhsa_next_free_sgpr 102
  .amdhsa_accum_offset 256
  .amdhsa_group_segment_fixed_size 0
  .amdhsa_kernarg_size 104
  .amdhsa_user_sgpr_count 2
  .amdhsa_user_sgpr_kernarg_segment_ptr 1
  .amdhsa_system_sgpr_workgroup_id_x 1
.end_amdhsa_kernel
"""
    return out, lds, nn


if __name__ == "__main__":
    asm, lds, nn = gen()
    open("cdna_kernels/" + NAME + ".s", "w").write(asm)
    print("lds", lds, "nops inserted", nn, "lines", asm.count("\n"))
```
